```python
import torch

def _softmax(x, axis=-1):
    return torch.softmax(x, dim=axis)

def _gelu(x):
    return torch.nn.functional.gelu(x, approximate='tanh')

def _silu(x):
    return torch.nn.functional.silu(x)

def _sigmoid(x):
    return torch.sigmoid(x)

def _layernorm(x, axis=-1, eps=1e-05):
    m = x.mean(dim=axis, keepdim=True)
    v = x.var(dim=axis, keepdim=True, unbiased=False)
    return (x - m) / torch.sqrt(v + eps)

def _scatter_add(tgt, idx, src, axis=0):
    return tgt.clone().index_add_(axis, idx, src)

def _segment_sum(src, seg, n):
    out = torch.zeros((n,) + src.shape[1:], dtype=src.dtype)
    return out.index_add_(0, seg, src)

def _pad(x, pw):
    flat = tuple((v for pair in reversed(pw) for v in pair))
    return torch.nn.functional.pad(x, flat)
kernel_name = 'adaLN_cond__gqa_block_cached__geglu_ffn__decode'

def setup_inputs():

    _w = lambda a: (lambda t: t.to(torch.bfloat16) if t.is_floating_point() else t)(torch.as_tensor(a))

    def _A_setup():
        B, Sq, D = (1, 1, 512)
        Hq, Hkv, Sk, Dh = (32, 8, 16384, 128)
        assert Hq % Hkv == 0, (Hq, Hkv)
        return {'x': _w((lambda *s: torch.randn(*s, dtype=torch.bfloat16) * 0.1)(B, Sq, D)), 'k_cache': _w((lambda *s: torch.randn(*s, dtype=torch.bfloat16) * 0.8)(B, Hkv, Sk, Dh)), 'v_cache': _w((lambda *s: torch.randn(*s, dtype=torch.bfloat16) * 0.8)(B, Hkv, Sk, Dh)), 'wq': _w((lambda *s: torch.randn(*s, dtype=torch.bfloat16) * 0.8)(D, Hq * Dh) * D ** (-0.5)), 'wo': _w((lambda *s: torch.randn(*s, dtype=torch.bfloat16) * 0.8)(Hq * Dh, D) * (Hq * Dh) ** (-0.5))}
    _A_in = _A_setup()

    def _B_setup():
        B, S, D, F = (1, 1, 512, 1792)
        return {'x': _w((lambda *s: torch.randn(*s, dtype=torch.bfloat16) * 0.1)(B, S, D)), 'w_gate': _w((lambda *s: torch.randn(*s, dtype=torch.bfloat16) * 0.1)(D, F)), 'w_up': _w((lambda *s: torch.randn(*s, dtype=torch.bfloat16) * 0.1)(D, F)), 'w_down': _w((lambda *s: torch.randn(*s, dtype=torch.bfloat16) * 0.1)(F, D))}
    _B_in = _B_setup()
    return {'A_x': _A_in['x'], 'A_k_cache': _A_in['k_cache'], 'A_v_cache': _A_in['v_cache'], 'A_wq': _A_in['wq'], 'A_wo': _A_in['wo'], 'B_x': _B_in['x'], 'B_w_gate': _B_in['w_gate'], 'B_w_up': _B_in['w_up'], 'B_w_down': _B_in['w_down'], 'c': _w((lambda *s: torch.randn(*s, dtype=torch.bfloat16) * 0.4)(1, 512) * 8.0), 'w_mod': _w((lambda *s: torch.randn(*s, dtype=torch.bfloat16) * 0.4)(512, 6 * 512) * 512 ** (-0.5) * 8.0)}

def reference(A_x, A_k_cache, A_v_cache, A_wq, A_wo, B_x, B_w_gate, B_w_up, B_w_down, c, w_mod):

    def _A_ref(x, k_cache, v_cache, wq, wo):
        B, Sq, D = x.shape
        Hq, Dh = (32, 128)
        Hkv = k_cache.shape[1]
        rep = Hq // Hkv
        q = (lambda x, *d: x.permute(*d))((x @ wq).reshape(B, Sq, Hq, Dh), 0, 2, 1, 3)
        k = (lambda x, n, axis: torch.repeat_interleave(x, n, dim=axis))(k_cache, rep, axis=1)
        v = (lambda x, n, axis: torch.repeat_interleave(x, n, dim=axis))(v_cache, rep, axis=1)
        scores = torch.einsum('bhqd,bhkd->bhqk', q, k) * Dh ** (-0.5)
        p = _softmax(scores, axis=-1)
        o = torch.einsum('bhqk,bhkd->bhqd', p, v)
        return (lambda x, *d: x.permute(*d))(o, 0, 2, 1, 3).reshape(B, Sq, Hq * Dh) @ wo

    def _B_ref(x, w_gate, w_up, w_down):
        return _gelu(x @ w_gate) * (x @ w_up) @ w_down
    x = A_x
    mod = (_silu(c) @ w_mod).reshape(c.shape[0], 6, 1, -1)
    sa, ca, ga, sb, cb, gb = (mod[:, 0].clone(), mod[:, 1].clone(), mod[:, 2].clone(), mod[:, 3].clone(), mod[:, 4].clone(), mod[:, 5].clone())
    h = _layernorm(x, axis=-1) * (1 + ca) + sa
    x = x + ga * _A_ref(h, A_k_cache, A_v_cache, A_wq, A_wo)
    h = _layernorm(x, axis=-1) * (1 + cb) + sb
    x = x + gb * _B_ref(h, B_w_gate, B_w_up, B_w_down)
    return x
```

```python
NAME = "adaLN_cond__gqa_block_cached__geglu_ffn__decode"
HEADER = open("cdna_kernels/%s.s.ref" % NAME).read().split("; Override launch")[0]
def wrap(body, grid, block, lds, vgpr=256, sgpr=102, accum=None):
    accum = accum or ((vgpr + 3) // 4 * 4)
    return (HEADER +
f"""; @launch grid=({grid},1,1) block=({block},1,1) lds={lds}
.amdgcn_target "amdgcn-amd-amdhsa--gfx950"
.text
.globl {NAME}_kernel
.p2align 8
.type {NAME}_kernel,@function
{NAME}_kernel:
{body}
.section .rodata,"a"
.p2align 6
.amdhsa_kernel {NAME}_kernel
  .amdhsa_next_free_vgpr {vgpr}
  .amdhsa_next_free_sgpr {sgpr}
  .amdhsa_accum_offset {accum}
  .amdhsa_group_segment_fixed_size 0
  .amdhsa_kernarg_size 112
  .amdhsa_user_sgpr_count 2
  .amdhsa_user_sgpr_kernarg_segment_ptr 1
  .amdhsa_system_sgpr_workgroup_id_x 1
  .amdhsa_float_denorm_mode_32 3
  .amdhsa_float_denorm_mode_16_64 3
.end_amdhsa_kernel
""")
```

```python
import sys
from gen_common import NAME, HEADER

M_H   = 0x00000
M_H2  = 0x02000
M_MOD = 0x04000
M_X1  = 0x10000
M_X2  = 0x90000
LSET  = 0x100000
GSET  = 0x200000
GRP_STRIDE = 0x12000
SH_Q, SH_AO, SH_AX2, SH_ACT, SH_ST, SH_T1 = 0, 1024, 2048, 3072, 4096, 8192
M_DBG = 0x800000
WS_RECORDS = 0x1000000
F_Q, F_KISS, F_CLR, F_WQ, F_P, F_OCNT = 0, 4, 8, 12, 16, 32
QBUF, HBUF, GRED, PBUF, ORED = 256, 1280, 2304, 2560, 11776
PSTR = 144
L_WD, L_WQ, L_WO, L_WG, L_WU = 20480, 28672, 45056, 61440, 69632
LDS_BYTES = 77824
TIMEOUT = 1 << 18

DPPM = "row_mask:0xf bank_mask:0xf"

class G:
    def __init__(self, stamps=False, WK=6, WV=6, wflags="nt"):
        self.L = []; self.n = 0; self.tail = []
        self.stamps = stamps; self.WK = WK; self.WV = WV; self.wflags = wflags
    def __call__(self, s): self.L.append("    " + s)
    def label(self, s): self.L.append(s + ":")
    def uniq(self, p): self.n += 1; return f"L_{p}_{self.n}"
    def nop(self, n): self(f"s_nop {n-1}")
    def stamp(self, k):
        if self.stamps: self(f"s_memrealtime s[{70+2*k}:{71+2*k}]")
    def dump_stamps(self, nst):
        if not self.stamps: return
        A = self
        A("s_waitcnt vmcnt(0) lgkmcnt(0)")
        A("s_mov_b64 exec, -1")
        for k in range(nst):
            A(f"v_writelane_b32 v1, s{70+2*k}, {k}")
        A("s_mul_i32 s52, s2, 12"); A("s_add_u32 s52, s52, s3"); A("s_lshl_b32 s52, s52, 6"); A(f"s_add_u32 s52, s52, {M_DBG}")
        A("v_lshlrev_b32 v2, 2, v0")
        A(f"s_mov_b64 exec, {hex((1 << nst) - 1)}")
        A("buffer_store_dword v1, v2, s[12:15], s52 offen")
        A("s_waitcnt vmcnt(0)")
    def srd(self, d, ptr, nbytes):
        A = self
        A(f"s_mov_b32 s{d}, s{ptr}"); A(f"s_mov_b32 s{d+1}, s{ptr+1}")
        A(f"s_mov_b32 s{d+2}, {hex(nbytes)}"); A(f"s_mov_b32 s{d+3}, 0x20000")
    def lstore(self, instr):
        A = self
        slow = A.uniq("slow"); back = A.uniq("back")
        A("s_cmp_eq_u32 s6, 1")
        A(f"s_cbranch_scc0 {slow}")
        A(instr)
        A.label(back)
        self.tail += [f"{slow}:", f"    {instr} sc1", f"    s_branch {back}"]
    def lds_wait(self, vaddr, off, cmp, val, vtmp, sleep=1):
        A = self
        lp = A.uniq("lw"); done = A.uniq("lwd")
        A("s_mov_b32 s54, 0")
        A.label(lp)
        A(f"ds_read_b32 v{vtmp}, v{vaddr} offset:{off}")
        A("s_add_u32 s54, s54, 1")
        A("s_waitcnt lgkmcnt(0)")
        A(f"v_readfirstlane_b32 s53, v{vtmp}")
        A(f"s_cmp_gt_u32 s54, {TIMEOUT*4}")
        A(f"s_cbranch_scc1 {done}")
        A(f"s_cmp_{cmp}_u32 s53, {val}")
        A(f"s_cbranch_scc1 {done}")
        if sleep: A(f"s_sleep {sleep}")
        A(f"s_branch {lp}")
        A.label(done)
    def ror_reduce(self, op, regs, steps=(8, 4, 2, 1)):
        A = self
        for k in steps:
            if len(regs) < 3: A.nop(3 - len(regs))
            for r in regs:
                A(f"v_{op}_f32_dpp v{r}, v{r}, v{r} row_ror:{k} {DPPM}")
    def rbf(self, d, s, t=None):
        self(f"v_cvt_pk_bf16_f32 v{d}, v{s}, v{s}")
        self(f"v_and_b32 v{d}, 0xffff0000, v{d}")
    def get_nonce(self, vz, vt):
        A = self
        lp = A.uniq("nonce"); done = A.uniq("nonced")
        A("s_mov_b32 s54, 0")
        A.label(lp)
        A(f"global_load_dword v{vt}, v{vz}, s[40:41] sc1")
        A("s_add_u32 s54, s54, 1")
        A("s_waitcnt vmcnt(0)")
        A(f"v_readfirstlane_b32 s7, v{vt}")
        A(f"s_cmp_gt_u32 s54, {TIMEOUT}")
        A(f"s_cbranch_scc1 {done}")
        A("s_cmp_eq_u32 s7, 0")
        A(f"s_cbranch_scc1 {lp}")
        A.label(done)
    def poll_begin(self):
        lp = self.uniq("poll")
        self("s_mov_b32 s54, 0")
        self.label(lp)
        return lp
    def poll_end(self, lp):
        A = self
        done = A.uniq("pd")
        A("s_add_u32 s54, s54, 1")
        A(f"s_cmp_gt_u32 s54, {TIMEOUT}")
        A(f"s_cbranch_scc1 {done}")
        A(f"s_cbranch_vccnz {lp}")
        A.label(done)
    def red32(self, voff, sbase, a, b, t):
        A = self
        lp = A.poll_begin()
        A(f"buffer_load_dwordx4 v[{a}:{a+3}], v{voff}, s[12:15], {sbase} offen sc1")
        A(f"buffer_load_dwordx4 v[{b}:{b+3}], v{voff}, s[12:15], {sbase} offen offset:1024 sc1")
        A("s_waitcnt vmcnt(0)")
        A(f"v_max3_u32 v{t}, v{a}, v{a+1}, v{a+2}")
        A(f"v_max3_u32 v{t}, v{t}, v{a+3}, v{b}")
        A(f"v_max3_u32 v{t}, v{t}, v{b+1}, v{b+2}")
        A(f"v_max_u32 v{t}, v{t}, v{b+3}")
        A(f"v_cmp_eq_u32 vcc, -1, v{t}")
        for i in range(4): A(f"v_add_f32 v{a+i}, v{a+i}, v{b+i}")
        A.poll_end(lp)
        A(f"v_permlane32_swap_b32 v{a}, v{a+1}")
        A(f"v_permlane32_swap_b32 v{a+2}, v{a+3}")
        A(f"v_add_f32 v{a}, v{a}, v{a+1}")
        A(f"v_add_f32 v{a+2}, v{a+2}, v{a+3}")
        A.nop(2)
        A(f"v_permlane16_swap_b32 v{a}, v{a+2}")
        A(f"v_add_f32 v{a}, v{a}, v{a+2}")
        A.ror_reduce("add", [a], steps=(8, 4))
    def ln_stats(self, x, e, vmean, vrden, t0, t1):
        A = self
        for i in range(4):
            A(f"v_lshlrev_b32 v{e+2*i}, 16, v{x+i}")
            A(f"v_and_b32 v{e+2*i+1}, 0xffff0000, v{x+i}")
        A(f"v_readfirstlane_b32 s55, v{e}")
        A.nop(2)
        for i in range(8): A(f"v_subrev_f32 v{e+i}, s55, v{e+i}")
        A(f"v_add_f32 v{t0}, v{e}, v{e+1}")
        A(f"v_mul_f32 v{t1}, v{e}, v{e}")
        A(f"v_fmac_f32 v{t1}, v{e+1}, v{e+1}")
        for i in range(2, 8):
            A(f"v_add_f32 v{t0}, v{t0}, v{e+i}")
            A(f"v_fmac_f32 v{t1}, v{e+i}, v{e+i}")
        A.nop(2)
        A(f"v_permlane32_swap_b32 v{t0}, v{t1}")
        A(f"v_add_f32 v{t0}, v{t0}, v{t1}")
        A(f"v_mov_b32 v{t1}, v{t0}")
        A.nop(2)
        A(f"v_permlane16_swap_b32 v{t0}, v{t1}")
        A(f"v_add_f32 v{t0}, v{t0}, v{t1}")
        A.ror_reduce("add", [t0])
        A.nop(1)
        A(f"v_readlane_b32 s56, v{t0}, 0")
        A(f"v_readlane_b32 s57, v{t0}, 32")
        A.nop(2)
        A(f"v_mov_b32 v{t0}, 0x3b000000")
        A(f"v_mul_f32 v{t1}, s56, v{t0}")
        A(f"v_mul_f32 v{t0}, s57, v{t0}")
        A(f"v_add_f32 v{vmean}, s55, v{t1}")
        A(f"v_fma_f32 v{t0}, -v{t1}, v{t1}, v{t0}")
        A(f"v_max_f32 v{t0}, 0, v{t0}")
        A.rbf(vmean, vmean)
        A.rbf(t0, t0)
        A(f"v_add_f32 v{t0}, 0x3727c5ac, v{t0}")
        A.rbf(t0, t0)
        A(f"v_sqrt_f32 v{t0}, v{t0}")
        A.nop(1)
        A.rbf(t0, t0)
        A(f"v_rcp_f32 v{vrden}, v{t0}")
        A.nop(1)
    def modulate(self, d, xv, vmean, vrden, c1, sh):
        A = self
        A(f"v_sub_f32 v{d}, v{xv}, v{vmean}")
        A.rbf(d, d)
        A(f"v_mul_f32 v{d}, v{d}, v{vrden}")
        A.rbf(d, d)
        A(f"v_mul_f32 v{d}, {c1}, v{d}")
        A.rbf(d, d)
        A(f"v_add_f32 v{d}, {sh}, v{d}")
    def silu8(self, c, s, t):
        A = self
        for i in range(4):
            A(f"v_lshlrev_b32 v{s+2*i}, 16, v{c+i}")
            A(f"v_and_b32 v{s+2*i+1}, 0xffff0000, v{c+i}")
        for i in range(8):
            A(f"v_mul_f32 v{t+i}, 0xbfb8aa3b, v{s+i}")
        for i in range(8): A(f"v_exp_f32 v{t+i}, v{t+i}")
        for i in range(8): A(f"v_add_f32 v{t+i}, 1.0, v{t+i}")
        for i in range(8): A(f"v_rcp_f32 v{t+i}, v{t+i}")
        for i in range(8): A(f"v_mul_f32 v{s+i}, v{s+i}, v{t+i}")
        for i in range(8): A.rbf(s + i, s + i)
    def dma(self, voff, srd, soff, ldsaddr_sgpr_or_imm):
        A = self
        A(f"s_mov_b32 m0, {ldsaddr_sgpr_or_imm}")
        A.nop(1)
        A(f"buffer_load_dwordx4 v{voff}, {srd}, {soff} offen {self.wflags} lds")

def gen(path, stamps=False, WK=6, WV=6, wflags="nt"):
    A = G(stamps, WK, WV, wflags)
    A.stamp(0)
    A("s_cmp_ge_u32 s2, 256")
    A("s_cbranch_scc1 L_exit")
    A("s_load_dwordx16 s[16:31], s[0:1], 0")
    A("s_load_dwordx8 s[32:39], s[0:1], 64")
    A("s_load_dwordx4 s[40:43], s[0:1], 96")
    A("v_lshrrev_b32 v1, 6, v0")
    A("v_and_b32 v0, 63, v0")
    A("s_and_b32 s4, s2, 7")
    A("v_readfirstlane_b32 s3, v1")
    A("s_lshr_b32 s5, s2, 3")
    A("v_lshrrev_b32 v2, 4, v0")
    A("v_bfe_u32 v3, v0, 2, 2")
    A("v_and_b32 v4, 3, v0")
    A("v_mov_b32 v5, 0")
    A("s_mov_b32 s6, 1")
    A("s_lshl_b32 s58, s4, 22"); A("s_lshl_b32 s59, s5, 17"); A("s_add_u32 s58, s58, s59")
    A("s_cmp_lt_u32 s3, 4"); A("s_cbranch_scc1 L_helper")
    A("s_cmp_ge_u32 s3, 8"); A("s_cbranch_scc1 L_vwave")
    KD = 40
    A("s_sub_u32 s60, s3, 4")
    A("s_lshl_b32 s59, s60, 15"); A("s_add_u32 s58, s58, s59")
    A("v_lshlrev_b32 v6, 8, v3")
    A("v_lshl_add_u32 v6, v2, 6, v6")
    A("v_lshl_add_u32 v6, v4, 4, v6")
    A("s_waitcnt lgkmcnt(0)")
    A.srd(8, 18, 0x2000000)
    A.srd(12, 42, WS_RECORDS)
    W = A.WK
    for i in range(32):
        r = KD + 4 * i
        A(f"buffer_load_dwordx4 v[{r}:{r+3}], v6, s[8:11], s58 offen offset:{(i % 4) * 1024} nt")
        if i % 4 == 3: A("s_add_u32 s58, s58, 4096")
        if i == W - 1:
            A("s_barrier")
        if i == 29:
            A("v_mov_b32 v7, 1")
            A("s_mov_b64 exec, 1")
            A(f"ds_add_u32 v5, v7 offset:{F_KISS}")
            A("s_mov_b64 exec, -1")
        if i >= W - 1 and i != 31: A(f"s_waitcnt vmcnt({W-1})")
    A.stamp(1)
    A("s_mov_b32 s62, 0x22222222"); A("s_mov_b32 s63, 0x22222222")
    A("s_mov_b32 s64, 0x44444444"); A("s_mov_b32 s65, 0x44444444")
    A("s_mov_b32 s66, 0x88888888"); A("s_mov_b32 s67, 0x88888888")
    A("v_lshlrev_b32 v7, 8, v3"); A("v_lshl_add_u32 v7, v2, 6, v7"); A("v_lshl_add_u32 v7, v4, 4, v7")
    A.lds_wait(5, F_Q, "lg", 0, 8)
    A("s_mov_b32 s6, s53")
    A(f"ds_read_b128 v[8:11], v7 offset:{QBUF}")
    A.stamp(2)
    A("s_waitcnt vmcnt(0) lgkmcnt(0)")
    C = 12
    TS = 20
    def extract(i):
        d = KD + 4 * i; c = C + i // 4; jj = i % 4
        dst = c if jj == 0 else TS + (i % 2)
        A(f"v_mov_b32_dpp v{dst}, v{d} quad_perm:[0,0,0,0] {DPPM}")
        for b in (1, 2, 3):
            A(f"v_add_f32_dpp v{dst}, v{d+b}, v{dst} quad_perm:[{b},{b},{b},{b}] {DPPM}")
        if jj: A(f"v_cndmask_b32 v{c}, v{c}, v{dst}, s[{60+2*jj}:{61+2*jj}]")
    for i in range(32):
        d = KD + 4 * i
        A(f"v_mfma_f32_16x16x32_bf16 v[{d}:{d+3}], v[{d}:{d+3}], v[8:11], 0")
        if i >= 3: extract(i - 3)
        elif i == 2: A.nop(6)
    A.nop(4); extract(29); extract(30); extract(31)
    for p in range(4):
        a, b = C + 2 * p, C + 2 * p + 1
        A(f"v_cvt_pk_bf16_f32 v{TS}, v{a}, v{b}")
        A(f"v_lshlrev_b32 v{a}, 16, v{TS}")
        A(f"v_and_b32 v{b}, 0xffff0000, v{TS}")
        A(f"v_mul_f32 v{a}, 0x3db504f3, v{a}")
        A(f"v_mul_f32 v{b}, 0x3db504f3, v{b}")
        A(f"v_cvt_pk_bf16_f32 v{TS}, v{a}, v{b}")
        A(f"v_lshlrev_b32 v{a}, 16, v{TS}")
        A(f"v_and_b32 v{b}, 0xffff0000, v{TS}")
    def head_allreduce(op, r, t):
        A.nop(2); A(f"v_{op}_f32_dpp v{r}, v{r}, v{r} quad_perm:[1,0,3,2] {DPPM}")
        A.nop(2); A(f"v_{op}_f32_dpp v{r}, v{r}, v{r} quad_perm:[2,3,0,1] {DPPM}")
        for sw in ("16", "32"):
            A(f"v_mov_b32 v{t}, v{r}"); A.nop(2)
            A(f"v_permlane{sw}_swap_b32 v{r}, v{t}")
            A(f"v_{op}_f32 v{r}, v{r}, v{t}")
    MW, LW = 22, 23
    A(f"v_max3_f32 v{MW}, v{C}, v{C+1}, v{C+2}")
    A(f"v_max3_f32 v{MW}, v{MW}, v{C+3}, v{C+4}")
    A(f"v_max3_f32 v{MW}, v{MW}, v{C+5}, v{C+6}")
    A(f"v_max_f32 v{MW}, v{MW}, v{C+7}")
    head_allreduce("max", MW, TS)
    for c in range(8): A(f"v_sub_f32 v{C+c}, v{C+c}, v{MW}")
    for c in range(8): A(f"v_mul_f32 v{C+c}, 0x3fb8aa3b, v{C+c}")
    for c in range(8): A(f"v_exp_f32 v{C+c}, v{C+c}")
    A.nop(1)
    A(f"v_add_f32 v{LW}, v{C}, v{C+1}")
    for c in range(2, 8): A(f"v_add_f32 v{LW}, v{LW}, v{C+c}")
    head_allreduce("add", LW, TS)
    A("s_lshl_b32 s61, s6, 20")
    A(f"s_mul_i32 s59, s4, {GRP_STRIDE}"); A("s_add_u32 s61, s61, s59")
    A("s_lshl_b32 s59, s5, 2"); A("s_add_u32 s59, s59, s60"); A("s_lshl_b32 s59, s59, 3")
    A(f"s_add_u32 s59, s59, {SH_ST}"); A("s_add_u32 s59, s59, s61")
    A("v_lshlrev_b32 v24, 10, v3")
    A("s_mov_b64 exec, 0x1111")
    A.lstore(f"buffer_store_dwordx2 v[{MW}:{LW}], v24, s[12:15], s59 offen")
    A("s_mov_b64 exec, -1")
    A.stamp(3)
    A("v_lshl_add_u32 v25, v2, 2, v4")
    A("v_lshl_add_u32 v24, v25, 6, v24")
    A(f"s_add_u32 s59, s61, {SH_ST}")
    S = KD
    lp = A.poll_begin()
    for q in range(4):
        A(f"buffer_load_dwordx4 v[{S+4*q}:{S+4*q+3}], v24, s[12:15], s59 offen offset:{16*q} sc1")
    A("s_waitcnt vmcnt(0)")
    A(f"v_max3_u32 v{TS}, v{S}, v{S+1}, v{S+2}")
    for r in range(3, 15, 2): A(f"v_max3_u32 v{TS}, v{TS}, v{S+r}, v{S+r+1}")
    A(f"v_max_u32 v{TS}, v{TS}, v{S+15}")
    A(f"v_cmp_eq_u32 vcc, -1, v{TS}")
    A.poll_end(lp)
    A.stamp(4)
    MG, LG = 26, 27
    A(f"v_max3_f32 v{MG}, v{S}, v{S+2}, v{S+4}")
    A(f"v_max3_f32 v{MG}, v{MG}, v{S+6}, v{S+8}")
    A(f"v_max3_f32 v{MG}, v{MG}, v{S+10}, v{S+12}")
    A(f"v_max_f32 v{MG}, v{MG}, v{S+14}")
    head_allreduce("max", MG, TS)
    for p in range(8): A(f"v_sub_f32 v{S+2*p}, v{S+2*p}, v{MG}")
    for p in range(8): A(f"v_mul_f32 v{S+2*p}, 0x3fb8aa3b, v{S+2*p}")
    for p in range(8): A(f"v_exp_f32 v{S+2*p}, v{S+2*p}")
    A(f"v_sub_f32 v{MW}, v{MW}, v{MG}")
    A(f"v_mul_f32 v{LG}, v{S}, v{S+1}")
    for p in range(1, 8): A(f"v_fmac_f32 v{LG}, v{S+2*p}, v{S+2*p+1}")
    A(f"v_mul_f32 v{MW}, 0x3fb8aa3b, v{MW}")
    head_allreduce("add", LG, TS)
    A(f"v_exp_f32 v{MW}, v{MW}")
    A(f"v_rcp_f32 v{LG}, v{LG}")
    A.nop(1)
    A(f"v_mul_f32 v{MW}, v{MW}, v{LG}")
    A("v_lshl_add_u32 v25, v2, 2, v3")
    A(f"v_mul_u32_u24 v25, {PSTR}, v25")
    A("v_lshl_add_u32 v25, v4, 2, v25")
    A(f"s_mul_i32 s59, s60, {16*PSTR}")
    A("v_add_u32 v25, s59, v25")
    for c in range(8):
        A(f"v_mul_f32 v{C+c}, v{C+c}, v{MW}")
        A(f"v_cvt_pk_bf16_f32 v{C+c}, v{C+c}, v{C+c}")
        A(f"ds_write_b32 v25, v{C+c} offset:{PBUF + 16*c}")
    A("s_lshl_b32 s59, s60, 2")
    A("v_mov_b32 v24, s59")
    A("v_mov_b32 v7, 1")
    A(f"ds_write_b32 v24, v7 offset:{F_P}")
    A("s_waitcnt lgkmcnt(0)")
    A.stamp(5)
    A.dump_stamps(6)
    A("s_endpgm")
    A.label("L_vwave")
    VD = 40
    A("s_sub_u32 s60, s3, 8")
    A("s_lshl_b32 s59, s60, 15"); A("s_add_u32 s58, s58, s59")
    A("v_lshlrev_b32 v6, 4, v0")
    for r in list(range(8, 26)): A(f"v_mov_b32 v{r}, 0")
    A("v_mov_b32 v26, 0"); A("v_mov_b32 v27, 0")
    A("v_mov_b32 v7, 0xffff")
    A("v_mov_b32 v36, 0xffff0000")
    A("s_mov_b32 s62, 0x11111111"); A("s_mov_b32 s63, 0x11111111")
    A("s_mov_b32 s64, 0x22222222"); A("s_mov_b32 s65, 0x22222222")
    A("s_mov_b32 s66, 0x44444444"); A("s_mov_b32 s67, 0x44444444")
    A("s_mov_b32 s68, 0x88888888"); A("s_mov_b32 s69, 0x88888888")
    A("v_cndmask_b32 v26, v26, v7, s[62:63]"); A("v_cndmask_b32 v26, v26, v36, s[64:65]")
    A("v_cndmask_b32 v27, v27, v7, s[66:67]"); A("v_cndmask_b32 v27, v27, v36, s[68:69]")
    A("v_lshl_add_u32 v37, v2, 2, v3")
    A(f"v_mul_u32_u24 v37, {PSTR}, v37")
    A(f"s_mul_i32 s59, s60, {16*PSTR}")
    A("v_add_u32 v37, s59, v37")
    A("s_waitcnt lgkmcnt(0)")
    A.srd(8, 20, 0x2000000)
    A.srd(12, 42, WS_RECORDS)
    A("s_barrier")
    A.lds_wait(5, F_KISS, "ge", 4, 7, sleep=2)
    A.stamp(1)
    W = A.WV
    for i in range(32):
        r = VD + 4 * i
        A(f"buffer_load_dwordx4 v[{r}:{r+3}], v6, s[8:11], s58 offen offset:{(i % 4) * 1024} nt")
        if i % 4 == 3: A("s_add_u32 s58, s58, 4096")
        if i >= W - 1 and i != 31: A(f"s_waitcnt vmcnt({W-1})")
    A.stamp(2)
    A("s_lshl_b32 s59, s60, 2")
    A("v_mov_b32 v38, s59")
    A.lds_wait(38, F_P, "lg", 0, 7)
    A.stamp(3)
    A(f"ds_read_b32 v39, v5 offset:{F_Q}")
    def preg(i):
        if i < 8: return 28 + i
        return VD + (i - 8)
    A(f"ds_read_b128 v[28:31], v37 offset:{PBUF}")
    A(f"ds_read_b128 v[32:35], v37 offset:{PBUF+16}")
    A("s_waitcnt lgkmcnt(0)")
    A("v_readfirstlane_b32 s6, v39")
    def xset(i): return 10 if i % 2 == 0 else 14
    def mkx(i):
        x = xset(i)
        A(f"v_and_b32 v{x}, v{preg(i)}, v26")
        A(f"v_and_b32 v{x+1}, v{preg(i)}, v27")
    mkx(0)
    for i in range(32):
        d = VD + 4 * i; x = xset(i)
        if i + 1 < 32:
            if i + 1 == 8: A("s_waitcnt lgkmcnt(0)")
            mkx(i + 1)
        else: A.nop(2)
        A(f"s_waitcnt vmcnt({31 - i})")
        A(f"v_mfma_f32_16x16x32_bf16 v[18:21], v[{x}:{x+3}], v[{d}:{d+3}], v[18:21]")
        A(f"v_mfma_f32_16x16x32_bf16 v[22:25], v[{x-2}:{x+1}], v[{d}:{d+3}], v[22:25]")
        if i == 6:
            for q in range(6):
                A(f"ds_read_b128 v[{VD+4*q}:{VD+4*q+3}], v37 offset:{PBUF + 32 + 16*q}")
    A.stamp(4)
    A("v_lshlrev_b32 v28, 5, v0")
    A("s_lshl_b32 s59, s60, 11")
    A("v_add_u32 v28, s59, v28")
    A("v_mov_b32 v29, 1")
    A("v_lshlrev_b32 v30, 3, v0")
    A("s_lshl_b32 s59, s60, 9")
    A("v_add_u32 v30, s59, v30")
    A("s_lshl_b32 s61, s6, 20")
    A(f"s_mul_i32 s59, s4, {GRP_STRIDE}"); A("s_add_u32 s61, s61, s59")
    A("s_lshl_b32 s59, s60, 14"); A("s_add_u32 s61, s61, s59")
    A("s_lshl_b32 s59, s5, 6"); A("s_add_u32 s61, s61, s59")
    A(f"s_add_u32 s61, s61, {SH_T1}")
    A(f"ds_write_b128 v28, v[18:21] offset:{ORED}")
    A(f"ds_write_b128 v28, v[22:25] offset:{ORED+16}")
    A("s_mov_b64 exec, 1")
    A(f"ds_add_u32 v5, v29 offset:{F_OCNT}")
    A("s_mov_b64 exec, -1")
    A("v_lshrrev_b32 v31, 3, v0"); A("v_lshlrev_b32 v31, 11, v31")
    A("v_and_b32 v32, 7, v0"); A("v_lshl_add_u32 v31, v32, 3, v31")
    A.lds_wait(5, F_OCNT, "ge", 4, 7, sleep=0)
    for w in range(4):
        A(f"ds_read_b64 v[{40+2*w}:{41+2*w}], v30 offset:{ORED + 2048*w}")
    A("s_waitcnt lgkmcnt(0)")
    A("v_add_f32 v40, v40, v42"); A("v_add_f32 v41, v41, v43")
    A("v_add_f32 v44, v44, v46"); A("v_add_f32 v45, v45, v47")
    A("v_add_f32 v40, v40, v44"); A("v_add_f32 v41, v41, v45")
    A.lstore("buffer_store_dwordx2 v[40:41], v31, s[12:15], s61 offen")
    A.stamp(5)
    A.dump_stamps(6)
    A("s_endpgm")
    A.label("L_helper")
    A("s_setprio 3")
    A("s_lshl_b32 s59, s4, 5"); A("s_add_u32 s59, s59, s5")
    A("v_lshlrev_b32 v6, 4, v0")
    A("s_cmp_eq_u32 s3, 0"); A("s_cbranch_scc1 L_h0")
    A("s_cmp_eq_u32 s3, 1"); A("s_cbranch_scc1 L_h1")
    A("s_cmp_eq_u32 s3, 2"); A("s_cbranch_scc1 L_h2")
    A("s_getpc_b64 s[62:63]")
    A.label("L_pc_ref")
    A(f"s_sub_u32 s62, s62, L_pc_ref-{NAME}_kernel")
    A("s_subb_u32 s63, s63, 0")
    A("v_lshlrev_b32 v7, 7, v0")
    A("global_load_dword v8, v7, s[62:63]")
    A("v_add_u32 v7, 0x2000, v7")
    A("global_load_dword v9, v7, s[62:63]")
    A("s_waitcnt lgkmcnt(0)")
    A.srd(12, 42, WS_RECORDS)
    A.srd(44, 22, 512 * 8192)
    A("v_lshrrev_b32 v56, 1, v0"); A("v_lshlrev_b32 v56, 13, v56")
    A("v_and_b32 v57, 1, v0"); A("v_lshl_add_u32 v56, v57, 4, v56")
    A("s_lshl_b32 s62, s4, 10"); A("s_lshl_b32 s63, s5, 5"); A("s_add_u32 s62, s62, s63")
    for i in range(16):
        A.dma(56, "s[44:47]", "s62", L_WQ + 1024 * i)
        A("s_add_u32 s62, s62, 0x40000")
    A("s_barrier")
    A("s_waitcnt vmcnt(0)")
    A("v_mov_b32 v7, 1")
    A(f"ds_write_b32 v5, v7 offset:{F_WQ}")
    A("s_branch L_tailprep")
    A.label("L_h2")
    for r in range(8, 12): A(f"v_mov_b32 v{r}, -1")
    A(f"s_mul_i32 s61, s4, {GRP_STRIDE}"); A(f"s_add_u32 s61, s61, {LSET}")
    A("s_lshl_b32 s62, s5, 11"); A("s_add_u32 s62, s62, s61"); A(f"s_add_u32 s62, s62, {SH_T1}")
    A("s_lshl_b32 s63, s5, 8"); A("s_add_u32 s63, s63, s61")
    A("s_lshl_b32 s64, s2, 11"); A(f"s_add_u32 s64, s64, {M_X1}")
    A("s_lshl_b32 s65, s2, 8"); A(f"s_add_u32 s65, s65, {M_X2}")
    A("s_waitcnt lgkmcnt(0)")
    A.srd(12, 42, WS_RECORDS)
    A("buffer_store_dwordx4 v[8:11], v6, s[12:15], s64 offen sc1")
    A("buffer_store_dwordx4 v[8:11], v6, s[12:15], s64 offen offset:1024 sc1")
    A("buffer_store_dwordx4 v[8:11], v6, s[12:15], s62 offen")
    A("buffer_store_dwordx4 v[8:11], v6, s[12:15], s62 offen offset:1024")
    A("s_mov_b64 exec, 0xffff")
    A("buffer_store_dwordx4 v[8:11], v6, s[12:15], s65 offen sc1")
    A("buffer_store_dwordx4 v[8:11], v6, s[12:15], s63 offen")
    A("s_mov_b64 exec, -1")
    A("s_barrier")
    A("s_waitcnt vmcnt(0)")
    A("v_mov_b32 v7, 1")
    A(f"ds_write_b32 v5, v7 offset:{F_CLR}")
    A("s_branch L_tailprep")
    A.label("L_h1")
    A("s_mov_b32 s62, 49152")
    A("v_mul_lo_u32 v7, v0, s62")
    A("s_lshl_b32 s62, s59, 4"); A("s_add_u32 s62, s62, 2048")
    A("s_waitcnt lgkmcnt(0)")
    A.srd(8, 36, 512 * 6144)
    A.srd(12, 42, WS_RECORDS)
    A.srd(44, 34, 1024)
    A("buffer_load_dwordx4 v[8:11], v6, s[44:47], 0 offen")
    for k in range(8):
        A(f"buffer_load_dwordx4 v[{40+4*k}:{43+4*k}], v7, s[8:11], s62 offen {A.wflags}")
        A("s_add_u32 s62, s62, 6144")
    A("s_barrier")
    A("s_waitcnt vmcnt(8)")
    A.silu8(8, 12, 20)
    for c in range(8): A(f"v_mov_b32 v{28+c}, 0")
    for k in range(8):
        A(f"s_waitcnt vmcnt({7-k})")
        for d in range(4):
            w = 40 + 4 * k + d
            A(f"v_lshlrev_b32 v20, 16, v{w}")
            A(f"v_and_b32 v21, 0xffff0000, v{w}")
            A(f"v_fmac_f32 v{28+2*d}, v{12+k}, v20")
            A(f"v_fmac_f32 v{29+2*d}, v{12+k}, v21")
    A.nop(2)
    for p in range(4): A(f"v_permlane32_swap_b32 v{28+2*p}, v{29+2*p}")
    for p in range(4): A(f"v_add_f32 v{28+2*p}, v{28+2*p}, v{29+2*p}")
    A.nop(2)
    A("v_permlane16_swap_b32 v28, v30"); A("v_permlane16_swap_b32 v32, v34")
    A("v_add_f32 v28, v28, v30"); A("v_add_f32 v32, v32, v34")
    A.ror_reduce("add", [28, 32])
    A.rbf(28, 28); A.rbf(32, 32)
    A.get_nonce(5, 8)
    A("v_mov_b32 v29, s7"); A("v_mov_b32 v33, s7")
    A("v_and_b32 v20, 1, v2"); A("v_lshlrev_b32 v20, 1, v20"); A("v_lshrrev_b32 v21, 1, v2"); A("v_or_b32 v20, v20, v21")
    A("v_lshlrev_b32 v20, 3, v20")
    A("s_lshl_b32 s62, s59, 6"); A(f"s_add_u32 s62, s62, {M_MOD}")
    A("s_mov_b32 s64, 0x00010001"); A("s_mov_b32 s65, 0x00010001")
    A("s_mov_b64 exec, s[64:65]")
    A("buffer_store_dwordx2 v[28:29], v20, s[12:15], s62 offen sc1")
    A("buffer_store_dwordx2 v[32:33], v20, s[12:15], s62 offen offset:32 sc1")
    A("s_mov_b64 exec, -1")
    A("s_branch L_tailprep")
    A.label("L_h0")
    A("v_lshlrev_b32 v7, 2, v0")
    A("ds_write_b32 v7, v5")
    A("s_mov_b32 s62, 49152")
    A("v_mul_lo_u32 v7, v0, s62")
    A("s_lshl_b32 s62, s59, 2")
    A("s_memrealtime s[64:65]")
    A("s_getreg_b32 s66, hwreg(HW_REG_XCC_ID)")
    A("s_waitcnt lgkmcnt(0)")
    A.srd(8, 36, 512 * 6144)
    A.srd(12, 42, WS_RECORDS)
    A.srd(44, 34, 1024)
    A.srd(48, 16, 1024)
    A("s_cmp_lg_u32 s2, 0"); A("s_cbranch_scc1 L_no_nonce")
    A("s_or_b32 s64, s64, 1")
    A("v_mov_b32 v8, s64")
    A("s_mov_b64 exec, 1")
    A("global_store_dword v5, v8, s[40:41] sc1")
    A("s_mov_b64 exec, -1")
    A.label("L_no_nonce")
    A("buffer_load_dwordx4 v[8:11], v6, s[44:47], 0 offen")
    A("buffer_load_dwordx4 v[36:39], v6, s[48:51], 0 offen")
    A("buffer_load_dword v35, v5, s[48:51], s62 offen")
    for k in range(8):
        A(f"buffer_load_dword v{40+2*k}, v7, s[8:11], s62 offen {A.wflags}")
        A(f"buffer_load_dword v{41+2*k}, v7, s[8:11], s62 offen offset:1024 {A.wflags}")
        A("s_add_u32 s62, s62, 6144")
    A("s_barrier")
    A("s_waitcnt vmcnt(18)")
    A.silu8(8, 12, 20)
    A("s_waitcnt vmcnt(16)")
    A.ln_stats(36, 20, 28, 29, 30, 31)
    for c in range(4): A(f"v_mov_b32 v{8+c}, 0")
    for k in range(8):
        A(f"s_waitcnt vmcnt({14 - 2*k})")
        for d in range(2):
            w = 40 + 2 * k + d
            A(f"v_lshlrev_b32 v20, 16, v{w}")
            A(f"v_and_b32 v21, 0xffff0000, v{w}")
            A(f"v_fmac_f32 v{8+2*d}, v{12+k}, v20")
            A(f"v_fmac_f32 v{9+2*d}, v{12+k}, v21")
    A.nop(2)
    A("v_permlane32_swap_b32 v8, v9"); A("v_permlane32_swap_b32 v10, v11")
    A("v_add_f32 v8, v8, v9"); A("v_add_f32 v10, v10, v11")
    A.nop(2)
    A("v_permlane16_swap_b32 v8, v10")
    A("v_add_f32 v8, v8, v10")
    A.ror_reduce("add", [8])
    A.rbf(8, 8)
    A("v_add_f32 v9, 1.0, v8")
    A.rbf(9, 9)
    A.nop(1)
    A("v_readlane_b32 s62, v8, 0"); A("v_readlane_b32 s63, v8, 32")
    A("v_readlane_b32 s64, v9, 16"); A("v_readlane_b32 s65, v9, 48")
    A("v_lshlrev_b32 v20, 16, v35"); A("v_and_b32 v21, 0xffff0000, v35")
    A.modulate(22, 20, 28, 29, "s64", "s62")
    A.modulate(23, 21, 28, 29, "s65", "s63")
    A("v_cvt_pk_bf16_f32 v24, v22, v23")
    A.stamp(1)
    A.get_nonce(5, 8)
    A.lds_wait(5, F_CLR, "lg", 0, 8)
    A("v_mov_b32 v25, s7"); A("v_mov_b32 v26, s66"); A("v_mov_b32 v27, s7")
    A("s_lshl_b32 s62, s59, 4")
    A("s_mov_b64 exec, 1")
    A(f"buffer_store_dwordx4 v[24:27], v5, s[12:15], s62 offen sc1")
    A("s_mov_b64 exec, -1")
    A.stamp(2)
    A.lds_wait(5, F_WQ, "lg", 0, 8)
    A("v_lshlrev_b32 v58, 8, v2"); A("v_lshl_add_u32 v58, v3, 5, v58"); A("v_lshl_add_u32 v58, v4, 3, v58")
    for t in range(16):
        A(f"ds_read_b64_tr_b16 v[{64+4*t}:{65+4*t}], v58 offset:{L_WQ + 1024*t}")
        A(f"ds_read_b64_tr_b16 v[{66+4*t}:{67+4*t}], v58 offset:{L_WQ + 1024*t + 128}")
        if t % 4 == 3: A("s_waitcnt lgkmcnt(0)")
    def poll_h(base, tagreg):
        lp = A.poll_begin()
        A("s_sleep 2")
        for q in range(4):
            A(f"buffer_load_dwordx4 v[{8+4*q}:{11+4*q}], v6, s[12:15], {base} offen offset:{1024*q} sc1")
        A("s_waitcnt vmcnt(0)")
        for q in range(4):
            A(f"v_xor_b32 v{9+4*q}, {tagreg}, v{9+4*q}")
            A(f"v_xor_b32 v{11+4*q}, {tagreg}, v{11+4*q}")
        A("v_or3_b32 v24, v9, v11, v13"); A("v_or3_b32 v24, v24, v15, v17"); A("v_or3_b32 v24, v24, v19, v21"); A("v_or_b32 v24, v24, v23")
        A("v_cmp_ne_u32 vcc, 0, v24")
        A.poll_end(lp)
    poll_h("0", "s7")
    A.stamp(3)
    A("v_lshlrev_b32 v25, 2, v0")
    for q in range(4): A(f"ds_write_b32 v25, v{8+4*q} offset:{HBUF + 256*q}")
    A("s_mov_b64 s[62:63], 0")
    A("s_mov_b32 s64, 0"); A("s_mov_b32 s65, -1")
    for q in range(4):
        A(f"v_readlane_b32 s66, v{10+4*q}, 0"); A(f"v_readlane_b32 s67, v{10+4*q}, 32")
        A.nop(2)
        A("v_mov_b32 v24, s66"); A("v_mov_b32 v26, s67")
        A("v_cndmask_b32 v24, v24, v26, s[64:65]")
        A(f"v_cmp_ne_u32 vcc, v24, v{10+4*q}")
        A.nop(1)
        A("s_or_b64 s[62:63], s[62:63], vcc")
    A("s_cmp_eq_u64 s[62:63], 0")
    A("s_cbranch_scc0 L_slow_setup")
    A.label("L_mode_done")
    A("s_lshl_b32 s61, s6, 20")
    A(f"s_mul_i32 s62, s4, {GRP_STRIDE}"); A("s_add_u32 s61, s61, s62")
    A("v_lshlrev_b32 v25, 4, v2")
    A("s_waitcnt lgkmcnt(0)")
    for half in range(2):
        for t in range(8): A(f"ds_read_b128 v[{128+4*t}:{131+4*t}], v25 offset:{HBUF + 64*(8*half+t)}")
        A("s_waitcnt lgkmcnt(0)")
        for t in range(8):
            tt = 8 * half + t
            A(f"v_mfma_f32_16x16x32_bf16 v[8:11], v[{64+4*tt}:{67+4*tt}], v[{128+4*t}:{131+4*t}], {'0' if tt == 0 else 'v[8:11]'}")
        A.nop(8)
    A("v_cvt_pk_bf16_f32 v12, v8, v9"); A("v_cvt_pk_bf16_f32 v13, v10, v11")
    A("v_min_u32 v12, -2, v12"); A("v_min_u32 v13, -2, v13")
    A("v_lshlrev_b32 v25, 3, v2")
    A("s_lshl_b32 s62, s5, 5"); A("s_add_u32 s62, s62, s61")
    A("s_mov_b32 s64, 0x00010001"); A("s_mov_b32 s65, 0x00010001")
    A("s_mov_b64 exec, s[64:65]")
    A.lstore(f"buffer_store_dwordx2 v[12:13], v25, s[12:15], s62 offen offset:{SH_Q}")
    A("s_mov_b64 exec, -1")
    A.stamp(4)
    lp = A.poll_begin()
    A(f"buffer_load_dwordx4 v[8:11], v6, s[12:15], s61 offen offset:{SH_Q} sc1")
    A("s_waitcnt vmcnt(0)")
    A("v_max3_u32 v12, v8, v9, v10"); A("v_max_u32 v12, v12, v11")
    A("v_cmp_eq_u32 vcc, -1, v12")
    A.poll_end(lp)
    A(f"ds_write_b128 v6, v[8:11] offset:{QBUF}")
    A("v_mov_b32 v12, s6")
    A(f"ds_write_b32 v5, v12 offset:{F_Q}")
    A.stamp(5)
    A.label("L_tailprep")
    A.srd(8, 24, 4096 * 1024)
    A.srd(44, 32, 1792 * 1024)
    A("v_lshrrev_b32 v56, 1, v0"); A("v_lshlrev_b32 v56, 10, v56")
    A("v_and_b32 v57, 1, v0"); A("v_lshl_add_u32 v56, v57, 4, v56")
    A("s_lshl_b32 s62, s4, 19"); A("s_lshl_b32 s63, s3, 17"); A("s_add_u32 s62, s62, s63")
    A("s_lshl_b32 s63, s5, 5"); A("s_add_u32 s62, s62, s63")
    A("s_lshl_b32 s64, s3, 12"); A(f"s_add_u32 s64, s64, {L_WO}")
    for i in range(4):
        A.dma(56, "s[8:11]", "s62", "s64")
        A("s_add_u32 s62, s62, 0x8000"); A("s_add_u32 s64, s64, 1024")
        if i % 2 == 1: A("s_waitcnt vmcnt(1)")
    A(f"s_mul_i32 s62, s4, {224*1024}"); A("s_lshl_b32 s63, s3, 16"); A("s_add_u32 s62, s62, s63")
    A("s_lshl_b32 s63, s5, 5"); A("s_add_u32 s62, s62, s63")
    A("s_lshl_b32 s64, s3, 11"); A(f"s_add_u32 s64, s64, {L_WD}")
    A.dma(56, "s[44:47]", "s62", "s64")
    A("s_cmp_eq_u32 s3, 3"); A("s_cbranch_scc1 L_no_d2")
    A("s_add_u32 s62, s62, 0x8000"); A("s_add_u32 s64, s64, 1024")
    A.dma(56, "s[44:47]", "s62", "s64")
    A.label("L_no_d2")
    A("s_waitcnt vmcnt(1)")
    A("s_cmp_ge_u32 s5, 28"); A("s_cbranch_scc1 L_no_gu")
    A.srd(8, 28, 512 * 3584); A.srd(44, 30, 512 * 3584)
    A("s_movk_i32 s62, 3584")
    A("v_mul_lo_u32 v57, v0, s62")
    A(f"s_mul_i32 s62, s3, {128*3584}"); A("s_mul_i32 s63, s4, 448"); A("s_add_u32 s62, s62, s63")
    A("s_lshl_b32 s63, s5, 4"); A("s_add_u32 s62, s62, s63")
    A("s_lshl_b32 s64, s3, 11"); A(f"s_add_u32 s64, s64, {L_WG}")
    for i in range(2):
        A.dma(57, "s[8:11]", "s62", "s64")
        A("s_add_u32 s65, s64, 8192")
        A.dma(57, "s[44:47]", "s62", "s65")
        A(f"s_add_u32 s62, s62, {64*3584}"); A("s_add_u32 s64, s64, 1024")
        A("s_waitcnt vmcnt(1)")
    A.label("L_no_gu")
    A.get_nonce(5, 8)
    A("v_lshlrev_b32 v58, 8, v2"); A("v_lshl_add_u32 v58, v3, 5, v58"); A("v_lshl_add_u32 v58, v4, 3, v58")
    A("s_lshl_b32 s62, s3, 12"); A("v_add_u32 v59, s62, v58")
    A("s_lshl_b32 s62, s3, 11"); A("v_add_u32 v60, s62, v58")
    for t in range(4):
        A(f"ds_read_b64_tr_b16 v[{64+4*t}:{65+4*t}], v59 offset:{L_WO + 1024*t}")
        A(f"ds_read_b64_tr_b16 v[{66+4*t}:{67+4*t}], v59 offset:{L_WO + 1024*t + 128}")
    for t in range(2):
        A(f"ds_read_b64_tr_b16 v[{96+4*t}:{97+4*t}], v60 offset:{L_WD + 1024*t}")
        A(f"ds_read_b64_tr_b16 v[{98+4*t}:{99+4*t}], v60 offset:{L_WD + 1024*t + 128}")
    A("s_waitcnt lgkmcnt(0)")
    A("v_lshrrev_b32 v61, 1, v4"); A("v_lshlrev_b32 v61, 13, v61")
    A("v_lshl_add_u32 v61, v2, 7, v61"); A("v_lshl_add_u32 v61, v3, 4, v61")
    A("v_and_b32 v62, 1, v4"); A("v_lshl_add_u32 v61, v62, 3, v61")
    A("v_add_u32 v61, s62, v61")
    for t in range(4):
        A(f"ds_read_b64_tr_b16 v[{80+4*t}:{81+4*t}], v61 offset:{L_WG + 512*t}")
        A(f"ds_read_b64_tr_b16 v[{82+4*t}:{83+4*t}], v61 offset:{L_WG + 512*t + 64}")
    A("v_and_b32 v20, 1, v2"); A("v_lshlrev_b32 v20, 1, v20"); A("v_lshrrev_b32 v21, 1, v2"); A("v_or_b32 v20, v20, v21")
    A("v_lshl_add_u32 v20, v4, 2, v20")
    A("s_lshl_b32 s62, s5, 4"); A("v_add_u32 v20, s62, v20")
    A("v_lshlrev_b32 v104, 1, v20")
    A("v_lshlrev_b32 v21, 3, v20")
    A("s_lshl_b32 s62, s3, 10"); A(f"s_add_u32 s62, s62, {M_MOD + 512*8}")
    A(f"s_add_u32 s63, s62, {512*8}")
    A(f"s_mov_b32 s64, {M_MOD}"); A(f"s_mov_b32 s65, {M_MOD + 1536*8}")
    A.srd(48, 16, 1024)
    A("buffer_load_ushort v105, v104, s[48:51], 0 offen")
    lp = A.poll_begin()
    A("s_sleep 4")
    A("buffer_load_dwordx4 v[8:11], v6, s[12:15], s62 offen sc1")
    A("buffer_load_dwordx4 v[12:15], v6, s[12:15], s63 offen sc1")
    A("buffer_load_dwordx2 v[16:17], v21, s[12:15], s64 offen sc1")
    A("buffer_load_dwordx2 v[18:19], v21, s[12:15], s65 offen sc1")
    A("s_waitcnt vmcnt(0)")
    for r in (9, 11, 13, 15, 17, 19): A(f"v_xor_b32 v{r}, s7, v{r}")
    A("v_or3_b32 v22, v9, v11, v13"); A("v_or3_b32 v22, v22, v15, v17"); A("v_or_b32 v22, v22, v19")
    A("v_cmp_ne_u32 vcc, 0, v22")
    A.poll_end(lp)
    A("v_mov_b32 v106, v8"); A("v_mov_b32 v107, v10")
    A("v_add_f32 v108, 1.0, v12"); A("v_add_f32 v109, 1.0, v14")
    A.rbf(108, 108); A.rbf(109, 109)
    A("v_mov_b32 v110, v16"); A("v_mov_b32 v111, v18")
    A("v_lshlrev_b32 v105, 16, v105")
    A.lds_wait(5, F_Q, "lg", 0, 8, sleep=4)
    A("s_mov_b32 s6, s53")
    A("s_lshl_b32 s61, s6, 20")
    A(f"s_mul_i32 s62, s4, {GRP_STRIDE}"); A("s_add_u32 s61, s61, s62")
    A("v_lshlrev_b32 v112, 4, v2")
    A("s_lshl_b32 s62, s3, 8"); A("v_add_u32 v113, s62, v112")
    A("s_lshl_b32 s62, s3, 7"); A("v_add_u32 v114, s62, v112")
    A("v_and_b32 v20, 15, v0"); A("v_lshlrev_b32 v115, 11, v20"); A("v_add_u32 v115, v115, v112")
    A("s_lshl_b32 s62, s4, 2"); A("s_add_u32 s62, s62, s3"); A("s_lshl_b32 s62, s62, 6")
    A("s_lshl_b32 s63, s5, 14"); A("s_add_u32 s66, s62, s63"); A(f"s_add_u32 s66, s66, {M_X1}")
    A("s_lshl_b32 s63, s5, 11"); A("s_add_u32 s67, s62, s63"); A(f"s_add_u32 s67, s67, {M_X2}")
    A("s_lshl_b32 s68, s2, 11"); A(f"s_add_u32 s68, s68, {M_X1}")
    A("s_lshl_b32 s69, s5, 11"); A("s_add_u32 s69, s69, s61"); A(f"s_add_u32 s69, s69, {SH_T1}")
    A("v_lshlrev_b32 v116, 2, v0"); A("s_lshl_b32 s62, s3, 8"); A("v_add_u32 v116, s62, v116")
    A("s_mov_b32 s50, 0x000f000f"); A("s_mov_b32 s51, 0x000f000f")
    A("s_mov_b32 s48, 0x00ff00ff"); A("s_mov_b32 s49, 0x00ff00ff")
    A("s_mov_b32 s46, 0x00010001"); A("s_mov_b32 s47, 0x00010001")
    A("s_waitcnt lgkmcnt(0)")
    A.stamp(6)
    A.lds_wait(5, F_OCNT, "ge", 4, 8, sleep=1)
    A.stamp(7)
    A("s_cmp_lg_u32 s3, 0"); A("s_cbranch_scc1 L_ao")
    A.red32(6, "s69", 8, 12, 16)
    A("v_cvt_pk_bf16_f32 v8, v8, v8")
    A("s_mov_b64 exec, s[50:51]")
    A.lstore(f"buffer_store_short v8, v104, s[12:15], s61 offen offset:{SH_AO}")
    A("s_mov_b64 exec, -1")
    A.stamp(8)
    A.label("L_ao")
    def gemv_poll(voff, off, nt, frag, dreg):
        lp = A.poll_begin()
        for t in range(nt):
            A(f"buffer_load_dwordx4 v[{24+4*t}:{27+4*t}], v{voff}, s[12:15], s61 offen offset:{off + 64*t} sc1")
        A("s_waitcnt vmcnt(0)")
        for t in range(nt):
            A(f"v_mfma_f32_16x16x32_bf16 v[{dreg}:{dreg+3}], v[{frag+4*t}:{frag+4*t+3}], v[{24+4*t}:{27+4*t}], {'0' if t == 0 else f'v[{dreg}:{dreg+3}]'}")
        A("v_pk_max_u16 v16, v24, v25")
        for r in range(26, 24 + 4 * nt): A(f"v_pk_max_u16 v16, v16, v{r}")
        A("v_lshrrev_b32 v17, 16, v16")
        A("v_max_u16 v16, v16, v17")
        A("v_cmp_eq_u16 vcc, -1, v16")
        A.poll_end(lp)
    gemv_poll(113, SH_AO, 4, 64, 8)
    A("s_mov_b64 exec, s[48:49]")
    A("buffer_store_dwordx4 v[8:11], v115, s[12:15], s66 offen sc1")
    A("s_mov_b64 exec, -1")
    A.stamp(9)
    A("s_cmp_lg_u32 s3, 0"); A("s_cbranch_scc1 L_ax2")
    A.red32(6, "s68", 8, 12, 16)
    A.rbf(8, 8)
    A("v_mul_f32 v8, v110, v8")
    A.rbf(8, 8)
    A("v_add_f32 v8, v105, v8")
    A("v_cvt_pk_bf16_f32 v8, v8, v8")
    A("s_mov_b64 exec, s[50:51]")
    A.lstore(f"buffer_store_short v8, v104, s[12:15], s61 offen offset:{SH_AX2}")
    A("s_mov_b64 exec, -1")
    A("v_and_b32 v105, 0xffff0000, v8")
    A.stamp(10)
    A.label("L_ax2")
    A("s_cmp_ge_u32 s5, 28"); A("s_cbranch_scc1 L_aact")
    lp = A.poll_begin()
    A(f"buffer_load_dwordx4 v[8:11], v6, s[12:15], s61 offen offset:{SH_AX2} sc1")
    A(f"buffer_load_dword v12, v116, s[12:15], s61 offen offset:{SH_AX2} sc1")
    A("s_waitcnt vmcnt(0)")
    A("v_pk_max_u16 v16, v8, v9"); A("v_pk_max_u16 v17, v10, v11"); A("v_pk_max_u16 v16, v16, v12"); A("v_pk_max_u16 v16, v16, v17")
    A("v_lshrrev_b32 v17, 16, v16")
    A("v_max_u16 v16, v16, v17")
    A("v_cmp_eq_u16 vcc, -1, v16")
    A.poll_end(lp)
    A.stamp(11)
    A.ln_stats(8, 24, 32, 33, 34, 35)
    A("v_lshlrev_b32 v20, 16, v12"); A("v_and_b32 v21, 0xffff0000, v12")
    A.modulate(22, 20, 32, 33, "v108", "v106")
    A.modulate(23, 21, 32, 33, "v109", "v107")
    A("v_cvt_pk_bf16_f32 v22, v22, v23")
    A(f"ds_write_b32 v116, v22 offset:{HBUF}")
    for t in range(4): A(f"ds_read_b128 v[{24+4*t}:{27+4*t}], v113 offset:{HBUF + 64*t}")
    for t in range(4):
        A(f"s_waitcnt lgkmcnt({3-t})")
        A(f"v_mfma_f32_16x16x32_bf16 v[8:11], v[{80+4*t}:{83+4*t}], v[{24+4*t}:{27+4*t}], {'0' if t == 0 else 'v[8:11]'}")
    A("s_lshl_b32 s62, s3, 6"); A("v_add_u32 v20, s62, v112")
    A("v_lshlrev_b32 v21, 2, v0")
    A("s_mov_b64 exec, s[46:47]")
    A.nop(4)
    A(f"ds_write_b128 v20, v[8:11] offset:{GRED}")
    A("s_mov_b64 exec, -1")
    A("s_waitcnt lgkmcnt(0)")
    A("s_barrier")
    A("s_cmp_lg_u32 s3, 0"); A("s_cbranch_scc1 L_aact")
    A("s_mov_b64 exec, 0xff")
    for w in range(4):
        A(f"ds_read_b32 v{8+w}, v21 offset:{GRED + 64*w}")
        A(f"ds_read_b32 v{12+w}, v21 offset:{GRED + 64*w + 32}")
    A("s_waitcnt lgkmcnt(0)")
    A("v_add_f32 v8, v8, v9"); A("v_add_f32 v10, v10, v11"); A("v_add_f32 v12, v12, v13"); A("v_add_f32 v14, v14, v15")
    A("v_add_f32 v8, v8, v10"); A("v_add_f32 v12, v12, v14")
    A.rbf(8, 8); A.rbf(12, 12)
    A("v_mul_f32 v9, v8, v8")
    A("v_mul_f32 v9, 0x3d372713, v9")
    A("v_fma_f32 v9, v9, v8, v8")
    A("v_mul_f32 v9, 0xc0135761, v9")
    A("v_exp_f32 v9, v9")
    A.nop(1)
    A("v_add_f32 v9, 1.0, v9")
    A("v_rcp_f32 v9, v9")
    A.nop(1)
    A("v_mul_f32 v8, v8, v9")
    A.rbf(8, 8)
    A("v_mul_f32 v8, v8, v12")
    A("v_cvt_pk_bf16_f32 v8, v8, v8")
    A("v_lshlrev_b32 v21, 1, v0")
    A("s_lshl_b32 s62, s5, 4"); A("s_add_u32 s62, s62, s61")
    A.lstore(f"buffer_store_short v8, v21, s[12:15], s62 offen offset:{SH_ACT}")
    A("s_mov_b64 exec, -1")
    A.stamp(12)
    A.label("L_aact")
    A("s_cmp_eq_u32 s3, 3"); A("s_cbranch_scc1 L_down1")
    gemv_poll(114, SH_ACT, 2, 96, 8)
    A("s_branch L_down_st")
    A.label("L_down1")
    gemv_poll(114, SH_ACT, 1, 96, 8)
    A.nop(4)
    A.label("L_down_st")
    A("s_mov_b64 exec, s[46:47]")
    A("buffer_store_dwordx4 v[8:11], v112, s[12:15], s67 offen sc1")
    A("s_mov_b64 exec, -1")
    A.stamp(13)
    A("s_cmp_lg_u32 s3, 0"); A("s_cbranch_scc1 L_hend")
    A("s_and_b32 s62, s5, 7"); A("s_cmp_lg_u32 s62, s4"); A("s_cbranch_scc1 L_hend")
    A("s_lshl_b32 s62, s5, 11"); A(f"s_add_u32 s62, s62, {M_X2}")
    A.srd(8, 38, 1024)
    A.red32(6, "s62", 8, 12, 16)
    A.rbf(8, 8)
    A("v_mul_f32 v8, v111, v8")
    A.rbf(8, 8)
    A("v_add_f32 v8, v105, v8")
    A("v_cvt_pk_bf16_f32 v8, v8, v8")
    A("s_mov_b64 exec, s[50:51]")
    A("buffer_store_short v8, v104, s[8:11], 0 offen")
    A("s_mov_b64 exec, -1")
    A.label("L_hend")
    A.stamp(14)
    A.dump_stamps(15)
    A.label("L_exit")
    A("s_endpgm")
    A.label("L_slow_setup")
    A("s_mov_b32 s6, 2")
    for r in range(8, 12): A(f"v_mov_b32 v{r}, -1")
    A(f"s_mul_i32 s61, s4, {GRP_STRIDE}"); A(f"s_add_u32 s61, s61, {GSET}")
    A("s_lshl_b32 s62, s5, 11"); A("s_add_u32 s62, s62, s61"); A(f"s_add_u32 s62, s62, {SH_T1}")
    A("s_lshl_b32 s63, s5, 8"); A("s_add_u32 s63, s63, s61")
    A("buffer_store_dwordx4 v[8:11], v6, s[12:15], s62 offen sc1")
    A("buffer_store_dwordx4 v[8:11], v6, s[12:15], s62 offen offset:1024 sc1")
    A("s_mov_b64 exec, 0xffff")
    A("buffer_store_dwordx4 v[8:11], v6, s[12:15], s63 offen sc1")
    A("s_mov_b64 exec, -1")
    A("s_waitcnt vmcnt(0)")
    for r in range(8, 12): A(f"v_mov_b32 v{r}, s7")
    A("s_lshl_b32 s62, s59, 4"); A(f"s_add_u32 s62, s62, {M_H2}")
    A("s_mov_b64 exec, 1")
    A("buffer_store_dwordx4 v[8:11], v5, s[12:15], s62 offen sc1")
    A("s_mov_b64 exec, -1")
    A(f"s_mov_b32 s62, {M_H2}")
    poll_h("s62", "s7")
    A("s_branch L_mode_done")
    A.L += A.tail
    A.L.append(".fill 4096, 4, 0xBF800000")
    body = "\n".join(A.L)
    src = HEADER + f"""; @launch grid=(256,1,1) block=(768,1,1) lds={LDS_BYTES}
.amdgcn_target "amdgcn-amd-amdhsa--gfx950"
.text
.globl {NAME}_kernel
.p2align 8
.type {NAME}_kernel,@function
{NAME}_kernel:
{body}
.section .rodata,"a"
.p2align 6
.amdhsa_kernel {NAME}_kernel
  .amdhsa_next_free_vgpr 168
  .amdhsa_next_free_sgpr 102
  .amdhsa_accum_offset 168
  .amdhsa_group_segment_fixed_size 0
  .amdhsa_kernarg_size 112
  .amdhsa_user_sgpr_count 2
  .amdhsa_user_sgpr_kernarg_segment_ptr 1
  .amdhsa_system_sgpr_workgroup_id_x 1
  .amdhsa_float_denorm_mode_32 3
  .amdhsa_float_denorm_mode_16_64 3
.end_amdhsa_kernel
"""
    open(path, "w").write(src)

if __name__ == "__main__":
    gen(sys.argv[1] if len(sys.argv) > 1 else "k.s", stamps=("stamps" in sys.argv))
```

```python
import sys
from gen_common import NAME, HEADER

M_E   = 0x00000
M_BL  = 0x01000
M_BG  = 0x02000
M_BG2 = 0x03000
M_MOD = 0x04000
M_GB  = 0x00800
M_X2  = 0x20000
M_X1  = 0x40000
LSET  = 0x100000
GSET  = 0x200000
GRP_STRIDE = 0x16000
SH_AO, SH_AX2, SH_ST, SH_Q, SH_GU, SH_T1 = 0, 1024, 4096, 8192, 16384, 24576
M_DBG = 0x800000
WS_RECORDS = 0x1000000
F_Q, F_R, F_MODE, F_CLR, F_P, F_OCNT, F_H, C_MOD, C_WQ, C_TAIL, C_ST, F_ST, F_SC = 0, 4, 8, 12, 16, 32, 36, 40, 44, 48, 52, 56, 60
STW, STG = 64, 192
QBUF, HBUF, SBUF, PBUF, ORED, SCB, RBUF = 256, 1280, 1536, 2560, 11776, 19968, 20992
PSTR = 144
T_DN, T_MOD, T_WQ, T_WO, T_GU = 22528, 30720, 47104, 63488, 79872
LDS_BYTES = 96256
LOCAL_TRIES = 256
TIMEOUT = 1 << 18

DPPM = "row_mask:0xf bank_mask:0xf"

class G:
    def __init__(self, stamps=False, WK=6, WV=6, wflags="nt"):
        self.L = []; self.n = 0; self.tail = []
        self.stamps = stamps; self.WK = WK; self.WV = WV; self.wflags = wflags
    def __call__(self, s): self.L.append("    " + s)
    def label(self, s): self.L.append(s + ":")
    def uniq(self, p): self.n += 1; return f"L_{p}_{self.n}"
    def nop(self, n): self(f"s_nop {n-1}")
    def stamp(self, k):
        if self.stamps == "ends" and k not in (0, 14): return
        if self.stamps: self(f"s_memrealtime s[{70+2*k}:{71+2*k}]")
    def dump_stamps(self, nst):
        if not self.stamps: return
        A = self
        if self.stamps == "ends" and nst != 15: return
        if self.stamps == "amp": return
        if self.stamps == "dbg":
            if nst != 15: return
            skip = A.uniq("nodbg")
            A("s_waitcnt vmcnt(0) lgkmcnt(0)")
            A("s_cmp_lg_u32 s2, 0"); A(f"s_cbranch_scc1 {skip}")
            A("s_mov_b64 exec, -1")
            for k in range(nst):
                A(f"s_sub_u32 s52, s{70+2*k}, s70")
                A(f"v_writelane_b32 v1, s52, {k}")
            A("v_lshlrev_b32 v2, 2, v0")
            A(f"s_mov_b64 exec, {hex((1 << nst) - 1)}")
            A("global_store_dword v2, v1, s[40:41]")
            A("s_waitcnt vmcnt(0)")
            A.label(skip)
            return
        A("s_waitcnt vmcnt(0) lgkmcnt(0)")
        A("s_mov_b64 exec, -1")
        for k in range(nst):
            A(f"v_writelane_b32 v1, s{70+2*k}, {k}")
        A("s_mul_i32 s52, s2, 12"); A("s_add_u32 s52, s52, s3"); A("s_lshl_b32 s52, s52, 6"); A(f"s_add_u32 s52, s52, {M_DBG}")
        A("v_lshlrev_b32 v2, 2, v0")
        A(f"s_mov_b64 exec, {hex((1 << nst) - 1)}")
        A("buffer_store_dword v1, v2, s[12:15], s52 offen")
        A("s_waitcnt vmcnt(0)")
    def srd(self, d, ptr, nbytes):
        A = self
        A(f"s_mov_b32 s{d}, s{ptr}"); A(f"s_mov_b32 s{d+1}, s{ptr+1}")
        A(f"s_mov_b32 s{d+2}, {hex(nbytes)}"); A(f"s_mov_b32 s{d+3}, 0x20000")
    def lstore(self, instr):
        A = self
        slow = A.uniq("slow"); back = A.uniq("back")
        A("s_cmp_eq_u32 s6, 1")
        A(f"s_cbranch_scc0 {slow}")
        A(instr)
        A.label(back)
        self.tail += [f"{slow}:", f"    {instr} sc1", f"    s_branch {back}"]
    def lds_wait(self, vaddr, off, cmp, val, vtmp, sleep=1):
        A = self
        lp = A.uniq("lw"); done = A.uniq("lwd")
        A("s_mov_b32 s54, 0")
        A.label(lp)
        A(f"ds_read_b32 v{vtmp}, v{vaddr} offset:{off}")
        A("s_add_u32 s54, s54, 1")
        A("s_waitcnt lgkmcnt(0)")
        A(f"v_readfirstlane_b32 s53, v{vtmp}")
        A(f"s_cmp_gt_u32 s54, {TIMEOUT*4}")
        A(f"s_cbranch_scc1 {done}")
        A(f"s_cmp_{cmp}_u32 s53, {val}")
        A(f"s_cbranch_scc1 {done}")
        if sleep: A(f"s_sleep {sleep}")
        A(f"s_branch {lp}")
        A.label(done)
    def ror_reduce(self, op, regs, steps=(8, 4, 2, 1)):
        A = self
        for k in steps:
            if len(regs) < 3: A.nop(3 - len(regs))
            for r in regs:
                A(f"v_{op}_f32_dpp v{r}, v{r}, v{r} row_ror:{k} {DPPM}")
    def rbf(self, d, s, t=None):
        self(f"v_cvt_pk_bf16_f32 v{d}, v{s}, v{s}")
        self(f"v_and_b32 v{d}, 0xffff0000, v{d}")
    def get_nonce(self, vz, vt):
        A = self
        lp = A.uniq("nonce"); done = A.uniq("nonced")
        A("s_mov_b32 s54, 0")
        A.label(lp)
        A(f"global_load_dword v{vt}, v{vz}, s[40:41] sc1")
        A("s_add_u32 s54, s54, 1")
        A("s_waitcnt vmcnt(0)")
        A(f"v_readfirstlane_b32 s7, v{vt}")
        A(f"s_cmp_gt_u32 s54, {TIMEOUT}")
        A(f"s_cbranch_scc1 {done}")
        A("s_cmp_eq_u32 s7, 0")
        A(f"s_cbranch_scc1 {lp}")
        A.label(done)
    def poll_begin(self):
        lp = self.uniq("poll")
        self("s_mov_b32 s54, 0")
        self.label(lp)
        return lp
    def poll_end(self, lp):
        A = self
        done = A.uniq("pd")
        A("s_add_u32 s54, s54, 1")
        A(f"s_cmp_gt_u32 s54, {TIMEOUT}")
        A(f"s_cbranch_scc1 {done}")
        A(f"s_cbranch_vccnz {lp}")
        A.label(done)
    def red32(self, voff, sbase, a, b, t, stamp=None, w=None):
        A = self
        lp = A.poll_begin()
        A(f"buffer_load_dwordx4 v[{a}:{a+3}], v{voff}, s[12:15], {sbase} offen sc1")
        A(f"buffer_load_dwordx4 v[{b}:{b+3}], v{voff}, s[12:15], {sbase} offen offset:1024 sc1")
        A("s_waitcnt vmcnt(0)")
        A(f"v_max3_u32 v{t}, v{a}, v{a+1}, v{a+2}")
        A(f"v_max3_u32 v{t}, v{t}, v{a+3}, v{b}")
        A(f"v_max3_u32 v{t}, v{t}, v{b+1}, v{b+2}")
        A(f"v_max_u32 v{t}, v{t}, v{b+3}")
        A(f"v_cmp_eq_u32 vcc, -1, v{t}")
        if w is None:
            for i in range(4): A(f"v_add_f32 v{a+i}, v{a+i}, v{b+i}")
        else:
            for i in range(4): A(f"v_mul_f32 v{a+i}, v{a+i}, v{w[0]}")
            for i in range(4): A(f"v_fmac_f32 v{a+i}, v{b+i}, v{w[1]}")
        A.poll_end(lp)
        if stamp is not None and self.stamps is True:
            A.stamp(stamp); A(f"s_mov_b32 s{70+2*(stamp+1)}, s54")
        A(f"v_permlane32_swap_b32 v{a}, v{a+1}")
        A(f"v_permlane32_swap_b32 v{a+2}, v{a+3}")
        A(f"v_add_f32 v{a}, v{a}, v{a+1}")
        A(f"v_add_f32 v{a+2}, v{a+2}, v{a+3}")
        A.nop(2)
        A(f"v_permlane16_swap_b32 v{a}, v{a+2}")
        A(f"v_add_f32 v{a}, v{a}, v{a+2}")
        A.ror_reduce("add", [a], steps=(8, 4))
    def red32p(self, voff, sbase, a, t, base, D, pace):
        A = self
        def issue(k):
            r = base + 8 * k
            A(f"buffer_load_dwordx4 v[{r}:{r+3}], v{voff}, s[12:15], {sbase} offen sc1")
            A(f"buffer_load_dwordx4 v[{r+4}:{r+7}], v{voff}, s[12:15], {sbase} offen offset:1024 sc1")
        lp = A.uniq("pp"); done = A.uniq("ppd")
        A("s_mov_b32 s54, 0")
        for k in range(D - 1):
            issue(k)
            if pace: A(f"s_sleep {pace}")
        A.label(lp)
        for k in range(D):
            r = base + 8 * k
            issue((k + D - 1) % D)
            A(f"s_waitcnt vmcnt({2 * (D - 1)})")
            A(f"v_max3_u32 v{t}, v{r}, v{r+1}, v{r+2}")
            A(f"v_max3_u32 v{t}, v{t}, v{r+3}, v{r+4}")
            A(f"v_max3_u32 v{t}, v{t}, v{r+5}, v{r+6}")
            A(f"v_max_u32 v{t}, v{t}, v{r+7}")
            A(f"v_cmp_eq_u32 vcc, -1, v{t}")
            for i in range(4): A(f"v_add_f32 v{a+i}, v{r+i}, v{r+4+i}")
            A(f"s_cbranch_vccz {done}")
            if pace: A(f"s_sleep {pace}")
        A("s_add_u32 s54, s54, 1")
        A(f"s_cmp_le_u32 s54, {TIMEOUT}")
        A(f"s_cbranch_scc1 {lp}")
        A.label(done)
        A.nop(1)
        A(f"v_permlane32_swap_b32 v{a}, v{a+1}")
        A(f"v_permlane32_swap_b32 v{a+2}, v{a+3}")
        A(f"v_add_f32 v{a}, v{a}, v{a+1}")
        A(f"v_add_f32 v{a+2}, v{a+2}, v{a+3}")
        A.nop(2)
        A(f"v_permlane16_swap_b32 v{a}, v{a+2}")
        A(f"v_add_f32 v{a}, v{a}, v{a+2}")
        A.ror_reduce("add", [a], steps=(8, 4))
    def ln_stats(self, x, e, vmean, vrden, t0, t1):
        A = self
        A(f"v_mov_b32 v{e}, 0x3f803f80")
        A(f"v_dot2_f32_bf16 v{t1}, v{x}, v{x}, 0")
        A(f"v_dot2_f32_bf16 v{t0}, v{x}, v{e}, 0")
        for i in range(1, 4):
            A(f"v_dot2_f32_bf16 v{t1}, v{x+i}, v{x+i}, v{t1}")
            A(f"v_dot2_f32_bf16 v{t0}, v{x+i}, v{e}, v{t0}")
        A.nop(3)
        A(f"v_permlane32_swap_b32 v{t0}, v{t1}")
        A(f"v_add_f32 v{t0}, v{t0}, v{t1}")
        A(f"v_mov_b32 v{t1}, v{t0}")
        A.nop(2)
        A(f"v_permlane16_swap_b32 v{t0}, v{t1}")
        A(f"v_add_f32 v{t0}, v{t0}, v{t1}")
        A.ror_reduce("add", [t0])
        A(f"v_mul_f32 v{t0}, 0x3b000000, v{t0}")
        A.nop(1)
        A(f"v_readlane_b32 s56, v{t0}, 0")
        A(f"v_readlane_b32 s57, v{t0}, 32")
        A.nop(1)
        A(f"v_mov_b32 v{t1}, s56")
        A(f"v_fma_f32 v{t0}, -v{t1}, v{t1}, s57")
        A(f"v_cvt_pk_bf16_f32 v{vmean}, v{t0}, v{t1}")
        A(f"v_lshlrev_b32 v{t0}, 16, v{vmean}")
        A(f"v_and_b32 v{vmean}, 0xffff0000, v{vmean}")
        A(f"v_max_f32 v{t0}, 0, v{t0}")
        A(f"v_add_f32 v{t0}, 0x3727c5ac, v{t0}")
        A.rbf(t0, t0)
        A(f"v_sqrt_f32 v{t0}, v{t0}")
        A.nop(1)
        A.rbf(t0, t0)
        A(f"v_rcp_f32 v{vrden}, v{t0}")
        A.nop(1)
    def modulate2(self, d, xp, vmean, vrden, c1a, c1b, sha, shb, t):
        A = self
        A(f"v_lshlrev_b32 v{t}, 16, v{xp}"); A(f"v_and_b32 v{t+1}, 0xffff0000, v{xp}")
        A(f"v_sub_f32 v{t}, v{t}, v{vmean}"); A(f"v_sub_f32 v{t+1}, v{t+1}, v{vmean}")
        for opa, opb in ((f"v_mul_f32 v{t}, v{vrden}, v{t}", f"v_mul_f32 v{t+1}, v{vrden}, v{t+1}"),
                         (f"v_mul_f32 v{t}, v{c1a}, v{t}", f"v_mul_f32 v{t+1}, v{c1b}, v{t+1}"),
                         (f"v_add_f32 v{t}, v{sha}, v{t}", f"v_add_f32 v{t+1}, v{shb}, v{t+1}")):
            A(f"v_cvt_pk_bf16_f32 v{d}, v{t}, v{t+1}")
            A(f"v_lshlrev_b32 v{t}, 16, v{d}"); A(f"v_and_b32 v{t+1}, 0xffff0000, v{d}")
            A(opa); A(opb)
        A(f"v_cvt_pk_bf16_f32 v{d}, v{t}, v{t+1}")
    def modulate(self, d, xv, vmean, vrden, c1, sh):
        A = self
        A(f"v_sub_f32 v{d}, v{xv}, v{vmean}")
        A.rbf(d, d)
        A(f"v_mul_f32 v{d}, v{d}, v{vrden}")
        A.rbf(d, d)
        A(f"v_mul_f32 v{d}, {c1}, v{d}")
        A.rbf(d, d)
        A(f"v_add_f32 v{d}, {sh}, v{d}")
    def silu8(self, c, s, t):
        A = self
        for i in range(4):
            A(f"v_lshlrev_b32 v{s+2*i}, 16, v{c+i}")
            A(f"v_and_b32 v{s+2*i+1}, 0xffff0000, v{c+i}")
        for i in range(8):
            A(f"v_mul_f32 v{t+i}, 0xbfb8aa3b, v{s+i}")
        for i in range(8): A(f"v_exp_f32 v{t+i}, v{t+i}")
        for i in range(8): A(f"v_add_f32 v{t+i}, 1.0, v{t+i}")
        for i in range(8): A(f"v_rcp_f32 v{t+i}, v{t+i}")
        for i in range(8): A(f"v_mul_f32 v{s+i}, v{s+i}, v{t+i}")
        for i in range(8): A.rbf(s + i, s + i)
    def dma(self, voff, srd, soff, ldsaddr_sgpr_or_imm):
        A = self
        A(f"s_mov_b32 m0, {ldsaddr_sgpr_or_imm}")
        A.nop(1)
        A(f"buffer_load_dwordx4 v{voff}, {srd}, {soff} offen {self.wflags} lds")


def gen(path, stamps=False, WK=5, WV=5, WV2=64, kpre=2, kgo=2, wflags="nt", h_sleep=4, exp="", exact=True, x2_sleep=0, late_tiles=True, t1x4=True, tlb=0, spin=0, warm=False, warm1=True, thr=24, WV3=0, tmode='A', st_sleep=16, h_first=30, q_first=0, q_sleep=0, s0=0, rate=2, diag='', xd=3, xpace=1, td=2, tpace=1, mj=1):
    A = G(stamps, WK, WV, wflags)
    def lds_signal_add(cnt, vone):
        A(f"v_mov_b32 v{vone}, 1")
        A("s_mov_b64 exec, 1")
        A(f"ds_add_u32 v5, v{vone} offset:{cnt}")
        A("s_mov_b64 exec, -1")
    A.stamp(0)
    A("s_cmp_ge_u32 s2, 256")
    A("s_cbranch_scc1 L_exit")
    A("s_load_dwordx16 s[16:31], s[0:1], 0")
    A("s_load_dwordx8 s[32:39], s[0:1], 64")
    A("s_load_dwordx4 s[40:43], s[0:1], 96")
    A("v_lshrrev_b32 v1, 6, v0")
    A("v_and_b32 v0, 63, v0")
    A("s_and_b32 s4, s2, 7")
    A("v_readfirstlane_b32 s3, v1")
    A("s_lshr_b32 s5, s2, 3")
    A("v_lshrrev_b32 v2, 4, v0")
    A("v_bfe_u32 v3, v0, 2, 2")
    A("v_and_b32 v4, 3, v0")
    A("v_mov_b32 v5, 0")
    A("s_mov_b32 s6, 1")
    A("s_lshr_b32 s44, s5, 3")
    A("s_and_b32 s45, s5, 7")
    A("s_lshl_b32 s58, s4, 22"); A("s_lshl_b32 s59, s5, 17"); A("s_add_u32 s58, s58, s59")
    A("s_cmp_lt_u32 s3, 4"); A("s_cbranch_scc1 L_helper")
    A("s_cmp_ge_u32 s3, 8"); A("s_cbranch_scc1 L_vwave")
    def modjob():
        if mj == 1:
            rank_e = [0, 1, 2, 15, 3, 4, 5, 6]; rank_o = [0, 15, 1, 15, 2, 15, 3, 4]
            ve = sum(v << (4 * i) for i, v in enumerate(rank_e)); vo = sum(v << (4 * i) for i, v in enumerate(rank_o))
            A("s_bitcmp1_b32 s4, 0")
            A(f"s_mov_b32 s46, {hex(ve)}"); A(f"s_mov_b32 s47, {hex(vo)}")
            A("s_cselect_b32 s46, s47, s46"); A("s_cselect_b32 s47, 5, 7"); A("s_cselect_b32 s61, 28, 0")
            A("s_lshl_b32 s59, s45, 2"); A("s_lshr_b32 s46, s46, s59"); A("s_and_b32 s46, s46, 15")
            A("s_mul_i32 s47, s47, s44")
            A("s_lshr_b32 s59, s4, 1"); A("s_mul_i32 s59, s59, 48"); A("s_add_u32 s59, s59, s61"); A("s_add_u32 s59, s59, s47")
            A("s_cmp_eq_u32 s46, 15"); A("s_cselect_b32 s59, 240, s59"); A("s_add_u32 s46, s46, s59")
            return
        tab = [0, 4, 1, 15, 2, 5, 3, 15, 6, 7, 10, 15, 8, 9, 11, 15]
        val = sum(v << (4 * i) for i, v in enumerate(tab))
        A(f"s_mov_b32 s46, {hex(val & 0xffffffff)}"); A(f"s_mov_b32 s47, {hex(val >> 32)}")
        A("s_lshl_b32 s59, s4, 1"); A("s_lshr_b32 s61, s5, 4"); A("s_add_u32 s59, s59, s61"); A("s_lshl_b32 s59, s59, 2")
        A("s_lshr_b64 s[46:47], s[46:47], s59")
        A("s_and_b32 s46, s46, 15"); A("s_lshl_b32 s46, s46, 4"); A("s_and_b32 s59, s5, 15"); A("s_add_u32 s46, s46, s59")
    def ffn_consts():
        A("s_lshr_b32 s56, s4, 1"); A("s_mul_i32 s56, s56, 448"); A("s_and_b32 s57, s4, 1")
        A("s_lshl_b32 s59, s57, 8"); A("s_add_u32 s56, s56, s59"); A("s_sub_u32 s57, 4, s57")
    def mktag():
        A("s_mul_i32 s7, s7, 0x9e3779b1"); A("s_add_u32 s7, s7, 0x7f4a7c15")
    KD = 40
    if stamps is True: A("s_memtime s[82:83]")
    A("s_sub_u32 s60, s3, 4")
    A("s_lshl_b32 s59, s60, 15"); A("s_add_u32 s58, s58, s59")
    A("v_lshlrev_b32 v6, 8, v3")
    A("v_lshl_add_u32 v6, v2, 6, v6")
    A("v_lshl_add_u32 v6, v4, 4, v6")
    A("s_waitcnt lgkmcnt(0)")
    A.srd(8, 18, 0x2000000)
    W = A.WK
    if kpre == 0:
        A("s_barrier"); A.srd(12, 42, WS_RECORDS)
    for i in range(32):
        r = KD + 4 * i
        A(f"buffer_load_dwordx4 v[{r}:{r+3}], v6, s[8:11], s58 offen offset:{(i % 4) * 1024} nt")
        if i % 4 == 3: A("s_add_u32 s58, s58, 4096")
        if i == kpre - 1:
            A("s_barrier")
            A.srd(12, 42, WS_RECORDS)
        if i >= W - 1 and i != 31: A(f"s_waitcnt vmcnt({W-1})")
    A(f"s_waitcnt vmcnt({kgo})")
    A("s_lshl_b32 s59, s60, 2")
    A("v_mov_b32 v30, s59")
    A("v_mov_b32 v7, 1")
    A(f"ds_write_b32 v30, v7 offset:{F_P}")
    A.stamp(1)
    A("v_lshlrev_b32 v7, 8, v4"); A("v_lshl_add_u32 v7, v2, 6, v7"); A("v_lshl_add_u32 v7, v3, 4, v7")
    if "S" in exp:
        A("s_waitcnt vmcnt(0)"); A.stamp(2); A.dump_stamps(6); A("s_endpgm")
    A.lds_wait(5, F_Q, "lg", 0, 8)
    A("s_mov_b32 s6, s53")
    A(f"ds_read_b128 v[8:11], v7 offset:{QBUF}")
    A.stamp(2)
    A("s_waitcnt vmcnt(0) lgkmcnt(0)")
    C = 12
    TS = 20
    def extract(i):
        d = KD + 4 * i; c = C + i // 4; jj = i % 4
        first = True
        for b in range(4):
            n = 4 * ((jj - b) & 3)
            ctl = f"row_ror:{n}" if n else "quad_perm:[0,1,2,3]"
            if first: A(f"v_mov_b32_dpp v{c}, v{d+b} {ctl} row_mask:0xf bank_mask:{hex(1 << jj)}")
            else: A(f"v_add_f32_dpp v{c}, v{d+b}, v{c} {ctl} row_mask:0xf bank_mask:{hex(1 << jj)}")
            first = False
    for i in range(32):
        d = KD + 4 * i
        A(f"v_mfma_f32_16x16x32_bf16 v[{d}:{d+3}], v[{d}:{d+3}], v[8:11], 0")
        if i >= 3: extract(i - 3)
        elif i == 2: A.nop(6)
    A.nop(4); extract(29); extract(30); extract(31)
    for p in range(4):
        a, b = C + 2 * p, C + 2 * p + 1
        A(f"v_cvt_pk_bf16_f32 v{TS}, v{a}, v{b}")
        A(f"v_lshlrev_b32 v{a}, 16, v{TS}")
        A(f"v_and_b32 v{b}, 0xffff0000, v{TS}")
        A(f"v_mul_f32 v{a}, 0x3db504f3, v{a}")
        A(f"v_mul_f32 v{b}, 0x3db504f3, v{b}")
        A(f"v_cvt_pk_bf16_f32 v{TS}, v{a}, v{b}")
        A(f"v_lshlrev_b32 v{a}, 16, v{TS}")
        A(f"v_and_b32 v{b}, 0xffff0000, v{TS}")
    def head_allreduce(op, r, t):
        A.nop(2); A(f"v_{op}_f32_dpp v{r}, v{r}, v{r} row_ror:4 {DPPM}")
        A.nop(2); A(f"v_{op}_f32_dpp v{r}, v{r}, v{r} row_ror:8 {DPPM}")
        for sw in ("16", "32"):
            A(f"v_mov_b32 v{t}, v{r}"); A.nop(2)
            A(f"v_permlane{sw}_swap_b32 v{r}, v{t}")
            A(f"v_{op}_f32 v{r}, v{r}, v{t}")
    MW, LW = 22, 23
    A(f"v_max3_f32 v{MW}, v{C}, v{C+1}, v{C+2}")
    A(f"v_max3_f32 v{MW}, v{MW}, v{C+3}, v{C+4}")
    A(f"v_max3_f32 v{MW}, v{MW}, v{C+5}, v{C+6}")
    A(f"v_max_f32 v{MW}, v{MW}, v{C+7}")
    head_allreduce("max", MW, TS)
    for c in range(8): A(f"v_sub_f32 v{C+c}, v{C+c}, v{MW}")
    for c in range(8): A(f"v_mul_f32 v{C+c}, 0x3fb8aa3b, v{C+c}")
    for c in range(8): A(f"v_exp_f32 v{C+c}, v{C+c}")
    def write_p(scale):
        A("v_lshl_add_u32 v25, v2, 2, v4")
        A(f"v_mul_u32_u24 v25, {PSTR}, v25")
        A("v_lshl_add_u32 v25, v3, 2, v25")
        A(f"s_mul_i32 s59, s60, {16*PSTR}")
        A("v_add_u32 v25, s59, v25")
        for c in range(8):
            if scale: A(f"v_mul_f32 v{C+c}, v{C+c}, v{MW}")
            A(f"v_cvt_pk_bf16_f32 v{32+c}, v{C+c}, v{C+c}")
            A(f"ds_write_b32 v25, v{32+c} offset:{PBUF + 16*c}")
        A("v_mov_b32 v7, 2")
        A(f"ds_write_b32 v30, v7 offset:{F_P}")
    if not exact: write_p(False); A.stamp(5)
    A.nop(1)
    A(f"v_add_f32 v{LW}, v{C}, v{C+1}")
    for c in range(2, 8): A(f"v_add_f32 v{LW}, v{LW}, v{C+c}")
    head_allreduce("add", LW, TS)
    A("s_lshl_b32 s59, s60, 5")
    A("v_lshl_add_u32 v24, v4, 3, s59")
    A("v_mov_b32 v25, 1")
    A("s_mov_b64 exec, 0xf")
    A(f"ds_write_b64 v24, v[{MW}:{LW}] offset:{STW}")
    A("s_mov_b64 exec, 1")
    A(f"ds_add_rtn_u32 v25, v5, v25 offset:{C_ST}")
    A("s_mov_b64 exec, -1")
    A("v_lshlrev_b32 v24, 3, v4"); A("v_lshl_add_u32 v26, v3, 5, v24")
    A("s_lshl_b32 s61, s6, 20")
    A(f"s_mul_i32 s59, s4, {GRP_STRIDE}"); A("s_add_u32 s61, s61, s59"); A(f"s_add_u32 s61, s61, {SH_ST}")
    A("s_waitcnt lgkmcnt(0)")
    A("v_readfirstlane_b32 s53, v25")
    A("s_cmp_lg_u32 s53, 3")
    A("s_cbranch_scc1 L_k_waitst")
    S = KD
    A(f"ds_read_b64 v[{S}:{S+1}], v26 offset:{STW}")
    A("s_waitcnt lgkmcnt(0)")
    A(f"v_max_f32_dpp v{S+2}, v{S}, v{S} row_ror:4 {DPPM}")
    A(f"v_mov_b32 v31, v{S}")
    A.nop(1)
    A(f"v_max_f32_dpp v{S+2}, v{S+2}, v{S+2} row_ror:8 {DPPM}")
    A(f"v_sub_f32 v{S}, v{S}, v{S+2}")
    A(f"v_mul_f32 v{S}, 0x3fb8aa3b, v{S}")
    A(f"v_exp_f32 v{S}, v{S}")
    A.nop(1)
    A(f"v_mul_f32 v{S+3}, v{S}, v{S+1}")
    A.nop(2)
    A(f"v_add_f32_dpp v{S+3}, v{S+3}, v{S+3} row_ror:4 {DPPM}")
    A.nop(2)
    A(f"v_add_f32_dpp v{S+3}, v{S+3}, v{S+3} row_ror:8 {DPPM}")
    A("s_lshr_b32 s59, s5, 1"); A("s_lshl_b32 s59, s59, 6"); A("s_and_b32 s62, s5, 1"); A("s_lshl_b32 s62, s62, 3")
    A("s_add_u32 s59, s59, s62"); A("s_add_u32 s59, s59, s61")
    A("v_lshlrev_b32 v27, 4, v0")
    A("s_mov_b64 exec, 0xf")
    A.lstore(f"buffer_store_dwordx2 v[{S+2}:{S+3}], v27, s[12:15], s59 offen")
    A("s_mov_b64 exec, -1")
    A.stamp(3)
    if not exact:
        A("v_lshlrev_b32 v24, 4, v4"); A("v_lshl_add_u32 v24, v3, 2, v24")
        A("v_mov_b32 v25, 1")
        A("s_mov_b64 exec, 0xffff")
        A(f"ds_write_b32 v24, v{S} offset:{STG}")
        A(f"ds_write_b32 v5, v25 offset:{F_ST}")
        A("s_mov_b64 exec, -1")
        A("s_branch L_k_waitst")
    lp = A.poll_begin()
    A(f"buffer_load_dwordx4 v[{S}:{S+3}], v27, s[12:15], s61 offen sc1")
    A("s_waitcnt vmcnt(0)")
    A(f"v_max3_u32 v{TS}, v{S}, v{S+1}, v{S+2}")
    A(f"v_max_u32 v{TS}, v{TS}, v{S+3}")
    A(f"v_cmp_eq_u32 vcc, -1, v{TS}")
    A.poll_end(lp)
    MG, LG = 28, 29
    A(f"v_max_f32 v{MG}, v{S}, v{S+2}")
    head_allreduce("max", MG, TS)
    for p in range(2): A(f"v_sub_f32 v{S+2*p}, v{S+2*p}, v{MG}")
    for p in range(2): A(f"v_mul_f32 v{S+2*p}, 0x3fb8aa3b, v{S+2*p}")
    for p in range(2): A(f"v_exp_f32 v{S+2*p}, v{S+2*p}")
    A.nop(1)
    A(f"v_mul_f32 v{LG}, v{S}, v{S+1}")
    A(f"v_fmac_f32 v{LG}, v{S+2}, v{S+3}")
    head_allreduce("add", LG, TS)
    A(f"v_rcp_f32 v{LG}, v{LG}")
    A("v_mov_b32 v25, 1")
    if exact:
        A("s_mov_b64 exec, 0xf")
        A(f"ds_write_b64 v24, v[{MG}:{LG}] offset:{STG}")
        A(f"ds_write_b32 v5, v25 offset:{F_ST}")
        A("s_mov_b64 exec, -1")
        A("s_branch L_k_havest")
        A.label("L_k_waitst")
        A.stamp(3)
        A.lds_wait(5, F_ST, "lg", 0, 25, sleep=1)
        A(f"ds_read_b64 v[{MG}:{LG}], v24 offset:{STG}")
        A("s_waitcnt lgkmcnt(0)")
        A.label("L_k_havest")
        A.stamp(4)
        A(f"v_sub_f32 v{MW}, v{MW}, v{MG}")
        A(f"v_mul_f32 v{MW}, 0x3fb8aa3b, v{MW}")
        A(f"v_exp_f32 v{MW}, v{MW}")
        A.nop(1)
        A(f"v_mul_f32 v{MW}, v{MW}, v{LG}")
    else:
        A(f"v_sub_f32 v31, v31, v{MG}")
        A(f"v_mul_f32 v31, 0x3fb8aa3b, v31")
        A(f"v_exp_f32 v31, v31")
        A("v_lshlrev_b32 v24, 4, v4"); A("v_lshl_add_u32 v24, v3, 2, v24")
        A(f"v_mul_f32 v31, v31, v{LG}")
        A("s_mov_b64 exec, 0xffff")
        A(f"ds_write_b32 v24, v31 offset:{STG}")
        A(f"ds_write_b32 v5, v25 offset:{F_ST}")
        A("s_mov_b64 exec, -1")
        A.stamp(4)
        A.label("L_k_waitst")
    if exact: write_p(True)
    A("s_waitcnt lgkmcnt(0)")
    if exact: A.stamp(5)
    A("s_cmp_eq_u32 s60, 0"); A("s_cbranch_scc1 L_reducer")
    A.dump_stamps(6)
    A("s_endpgm")
    A.label("L_reducer")
    A("s_setprio 3")
    A("v_lshlrev_b32 v6, 4, v0")
    A("v_and_b32 v20, 1, v2"); A("v_lshlrev_b32 v20, 1, v20"); A("v_lshrrev_b32 v21, 1, v2"); A("v_or_b32 v20, v20, v21")
    A("v_lshl_add_u32 v21, v4, 2, v20")
    A("v_add_u32 v22, s4, v20"); A("v_and_b32 v22, 3, v22"); A("v_lshl_add_u32 v22, v22, 2, v4")
    A("s_lshl_b32 s59, s5, 4")
    A("v_add_lshl_u32 v21, v21, s59, 1")
    A("v_add_lshl_u32 v22, v22, s59, 1")
    A("s_lshl_b32 s61, s6, 20")
    A(f"s_mul_i32 s59, s4, {GRP_STRIDE}"); A("s_add_u32 s61, s61, s59")
    A("s_lshl_b32 s59, s5, 11")
    A("s_add_u32 s62, s59, s61"); A(f"s_add_u32 s62, s62, {SH_T1}")
    A(f"s_add_u32 s64, s59, {M_X2}")
    A("s_lshl_b32 s63, s2, 11"); A(f"s_add_u32 s63, s63, {M_X1}")
    A("s_mov_b32 s50, 0x000f000f"); A("s_mov_b32 s51, 0x000f000f")
    A.srd(8, 38, 1024)
    A.lds_wait(5, F_SC, "ge", 3, 8, sleep=4)
    A(f"ds_read_b128 v[24:27], v6 offset:{RBUF}")
    A("v_mov_b32 v28, 1"); A("v_mov_b32 v29, 2")
    if not exact:
        A("v_lshrrev_b32 v30, 3, v0"); A("v_lshlrev_b32 v30, 6, v30")
        A("v_and_b32 v31, 1, v3"); A("v_lshl_add_u32 v30, v31, 3, v30")
        A("s_lshl_b32 s59, s44, 4"); A("s_add_u32 s59, s59, s61"); A(f"s_add_u32 s59, s59, {SH_ST}")
        lp = A.poll_begin()
        A(f"s_sleep {st_sleep}")
        A("buffer_load_dwordx2 v[40:41], v30, s[12:15], s59 offen sc1")
        A("buffer_load_dwordx2 v[42:43], v30, s[12:15], s59 offen offset:512 sc1")
        A("s_waitcnt vmcnt(0)")
        A("v_max3_u32 v20, v40, v41, v42"); A("v_max_u32 v20, v20, v43")
        A("v_cmp_eq_u32 vcc, -1, v20")
        A.poll_end(lp)
        A("v_max_f32 v44, v40, v42")
        head_allreduce("max", 44, 20)
        A("v_sub_f32 v40, v40, v44"); A("v_sub_f32 v42, v42, v44")
        A("v_mul_f32 v40, 0x3fb8aa3b, v40"); A("v_mul_f32 v42, 0x3fb8aa3b, v42")
        A("v_exp_f32 v40, v40"); A("v_exp_f32 v42, v42")
        A.nop(1)
        A("v_mul_f32 v45, v40, v41"); A("v_fmac_f32 v45, v42, v43")
        head_allreduce("add", 45, 20)
        A("v_rcp_f32 v45, v45")
        A.nop(1)
        A("v_mul_f32 v40, v40, v45"); A("v_mul_f32 v42, v42, v45")
        A.stamp(4)
    if tlb:
        A(f"v_lshlrev_b32 v30, {tlb}, v0")
        A(f"v_add_u32 v31, {M_X1 + 1920}, v30")
        A("v_add_u32 v30, s61, v30"); A("v_add_u32 v30, 3072, v30")
        lp = A.uniq("tw"); dn = A.uniq("twd")
        A("s_mov_b32 s54, 0")
        A.label(lp)
        A(f"s_mov_b64 exec, {hex((1 << ((GRP_STRIDE >> tlb))) - 1)}")
        A("buffer_load_dword v32, v30, s[12:15], 0 offen sc1")
        A(f"s_mov_b64 exec, {hex((1 << (0x20000 >> tlb)) - 1)}")
        A("buffer_load_dword v33, v31, s[12:15], 0 offen sc1")
        A("s_mov_b64 exec, 1")
        A("buffer_load_dword v34, v5, s[8:11], 0 offen sc1")
        A("s_mov_b64 exec, -1")
        for k in range(4):
            A(f"ds_read_b32 v8, v5 offset:{F_OCNT}")
            A("s_waitcnt lgkmcnt(0)")
            A("v_readfirstlane_b32 s53, v8")
            A("s_cmp_ge_u32 s53, 1"); A(f"s_cbranch_scc1 {dn}")
            A("s_sleep 4")
        A("s_add_u32 s54, s54, 1"); A(f"s_cmp_lt_u32 s54, {TIMEOUT}"); A("s_waitcnt vmcnt(0)"); A(f"s_cbranch_scc1 {lp}")
        A.label(dn)
    def warm_loop(loads, thresh, vtmp):
        lp = A.uniq("wl"); dn = A.uniq("wld")
        A("s_mov_b32 s54, 0")
        A.label(lp)
        for ld in loads: A(ld)
        for k in range(3):
            A(f"ds_read_b32 v{vtmp}, v5 offset:{F_OCNT}")
            A("s_waitcnt lgkmcnt(0)")
            A(f"v_readfirstlane_b32 s53, v{vtmp}")
            A(f"s_cmp_ge_u32 s53, {thresh}"); A(f"s_cbranch_scc1 {dn}")
            A("s_sleep 6")
        A("s_add_u32 s54, s54, 1"); A(f"s_cmp_lt_u32 s54, {TIMEOUT}"); A("s_waitcnt vmcnt(0)"); A(f"s_cbranch_scc1 {lp}")
        A.label(dn)
    if warm:
        warm_loop(["buffer_load_dwordx4 v[32:35], v6, s[12:15], s62 offen sc1", "buffer_load_dwordx4 v[36:39], v6, s[12:15], s62 offen offset:1024 sc1"], 1, 8)
    A.lds_wait(5, F_OCNT, "ge", 8, 8, sleep=0)
    A.stamp(7)
    if stamps is True: A("s_memtime s[88:89]")
    if td and exact: A.red32p(6, "s62", 8, 16, 48, td, tpace)
    else: A.red32(6, "s62", 8, 12, 16, stamp=11, w=None if exact else (40, 42))
    A("v_cvt_pk_bf16_f32 v8, v8, v8")
    A("s_mov_b64 exec, s[50:51]")
    A.lstore(f"buffer_store_short v8, v21, s[12:15], s61 offen offset:{SH_AO}")
    A("s_mov_b64 exec, -1")
    A(f"ds_write_b32 v5, v28 offset:{F_R}")
    A.stamp(8)
    A.lds_wait(5, C_WQ, "ge", 8, 8, sleep=0)
    A("s_waitcnt vmcnt(0)")
    if xd: A.red32p(6, "s63", 8, 16, 48, xd, xpace)
    else: A.red32(6, "s63", 8, 12, 16)
    A.rbf(8, 8)
    A("v_mul_f32 v8, v24, v8")
    A.rbf(8, 8)
    A("v_add_f32 v8, v26, v8")
    A("v_cvt_pk_bf16_f32 v8, v8, v8")
    A("s_mov_b64 exec, s[50:51]")
    A.lstore(f"buffer_store_short v8, v22, s[12:15], s61 offen offset:{SH_AX2}")
    A("s_mov_b64 exec, -1")
    A(f"ds_write_b32 v5, v29 offset:{F_R}")
    A("v_and_b32 v26, 0xffff0000, v8")
    A.stamp(10)
    A("s_cmp_lg_u32 s45, s4"); A("s_cbranch_scc1 L_rend")
    A.lds_wait(5, C_WQ, "ge", 12, 8, sleep=0)
    if xd: A("s_waitcnt vmcnt(0)"); A.red32p(6, "s64", 8, 16, 48, xd, xpace)
    else: A.red32(6, "s64", 8, 12, 16)
    A.rbf(8, 8)
    A("v_mul_f32 v8, v25, v8")
    A.rbf(8, 8)
    A("v_add_f32 v8, v26, v8")
    A("v_cvt_pk_bf16_f32 v8, v8, v8")
    A("s_mov_b64 exec, s[50:51]")
    A("buffer_store_short v8, v22, s[8:11], 0 offen")
    A("s_mov_b64 exec, -1")
    A("s_cmp_lg_u32 s2, 0"); A("s_cbranch_scc1 L_rend")
    A("s_mov_b64 exec, 1")
    A("buffer_store_dword v27, v5, s[12:15], 0 offen")
    A("s_mov_b64 exec, -1")
    if diag == "endsleep":
        for _ in range(4): A("s_sleep 127")
    if diag.startswith("amp"):
        k = int(diag[3:])
        A("s_memrealtime s[98:99]")
        A("s_waitcnt lgkmcnt(0)")
        A(f"s_sub_u32 s52, s{70+2*k}, s70")
        A("s_add_u32 s52, s52, s98")
        A.label("L_amp")
        A("s_memrealtime s[54:55]")
        A("s_waitcnt lgkmcnt(0)")
        A("s_sub_u32 s53, s52, s54")
        A("s_cmp_gt_i32 s53, 0")
        A("s_cbranch_scc1 L_amp")
    A.label("L_rend")
    A.stamp(14)
    if stamps is True: A("s_memtime s[96:97]")
    A.dump_stamps(15)
    A("s_endpgm")
    A.label("L_vwave")
    VD = 40
    A("s_sub_u32 s60, s3, 8")
    A("s_lshl_b32 s59, s60, 15"); A("s_add_u32 s58, s58, s59")
    A("v_lshlrev_b32 v6, 4, v0")
    A("s_waitcnt lgkmcnt(0)")
    A.srd(8, 20, 0x2000000)
    A.srd(12, 42, WS_RECORDS)
    if "N" not in exp:
        A("s_cmp_eq_u32 s60, 0"); A("s_cbranch_scc1 L_v0")
    A("s_cmp_eq_u32 s60, 1"); A("s_cbranch_scc0 L_vbar")
    A("s_getpc_b64 s[62:63]")
    A.label("L_pc_ref")
    A(f"s_sub_u32 s62, s62, L_pc_ref-{NAME}_kernel")
    A("s_subb_u32 s63, s63, 0")
    A("v_lshlrev_b32 v7, 7, v0")
    A("s_lshl_b32 s59, s5, 9")
    A("v_add_u32 v7, s59, v7")
    A("s_mov_b64 exec, 0xf")
    A("global_load_dword v40, v7, s[62:63]")
    A("s_mov_b64 exec, -1")
    A.label("L_vbar")
    A("s_barrier")
    A("s_branch L_vmain")
    A.label("L_v0")
    def clears(setbase, fl):
        for r in range(8, 12): A(f"v_mov_b32 v{r}, -1")
        A(f"s_mul_i32 s61, s4, {GRP_STRIDE}"); A(f"s_add_u32 s61, s61, {setbase}")
        A("s_lshl_b32 s62, s5, 11"); A("s_add_u32 s62, s62, s61"); A(f"s_add_u32 s62, s62, {SH_T1}")
        A("s_mul_i32 s63, s5, 768"); A("s_add_u32 s63, s63, s61")
        A(f"buffer_store_dwordx4 v[8:11], v6, s[12:15], s62 offen {fl}")
        A(f"buffer_store_dwordx4 v[8:11], v6, s[12:15], s62 offen offset:1024 {fl}")
        A("s_mov_b32 s64, -1"); A("s_mov_b32 s65, 0xffff")
        A("s_mov_b64 exec, s[64:65]")
        A(f"buffer_store_dwordx4 v[8:11], v6, s[12:15], s63 offen {fl}")
        A("s_mov_b64 exec, -1")
    A("s_load_dword s7, s[42:43], 0")
    clears(LSET, "")
    A("s_lshl_b32 s64, s2, 11"); A(f"s_add_u32 s64, s64, {M_X1}")
    A("buffer_store_dwordx4 v[8:11], v6, s[12:15], s64 offen sc1")
    A("buffer_store_dwordx4 v[8:11], v6, s[12:15], s64 offen offset:1024 sc1")
    A("s_cmp_lg_u32 s45, s4"); A("s_cbranch_scc1 L_v0_nox")
    A("s_lshl_b32 s64, s5, 11"); A(f"s_add_u32 s64, s64, {M_X2}")
    A("buffer_store_dwordx4 v[8:11], v6, s[12:15], s64 offen sc1")
    A("buffer_store_dwordx4 v[8:11], v6, s[12:15], s64 offen offset:1024 sc1")
    A.label("L_v0_nox")
    A("s_getreg_b32 s66, hwreg(HW_REG_XCC_ID)")
    A("s_barrier")
    A("s_waitcnt vmcnt(0) lgkmcnt(0)")
    A.stamp(7)
    mktag()
    A("v_mov_b32 v13, 16")
    A("s_mov_b64 exec, 1")
    A(f"ds_add_u32 v5, v13 offset:{F_CLR}")
    A("s_mov_b64 exec, -1")
    A("v_mov_b32 v12, s66"); A("v_mov_b32 v13, s7")
    A("s_lshl_b32 s59, s4, 8"); A(f"s_add_u32 s59, s59, {M_BL}")
    A("s_lshl_b32 s61, s5, 3"); A("s_add_u32 s67, s61, s59")
    A(f"s_add_u32 s68, s67, {M_BG - M_BL}")
    A("s_mov_b64 exec, 1")
    A(f"buffer_store_dwordx2 v[12:13], v5, s[12:15], s67 offen")
    A(f"buffer_store_dwordx2 v[12:13], v5, s[12:15], s68 offen sc1")
    def poll_b(limit, fallback):
        lp = A.uniq("pb"); done = A.uniq("pbd")
        A("s_mov_b64 exec, 0xffff")
        A("s_mov_b32 s54, 0")
        A.label(lp)
        A("s_sleep 2")
        A(f"buffer_load_dwordx4 v[8:11], v6, s[12:15], s59 offen sc1")
        A("s_add_u32 s54, s54, 1")
        A("s_waitcnt vmcnt(0)")
        A("v_xor_b32 v9, s7, v9"); A("v_xor_b32 v11, s7, v11"); A("v_or_b32 v16, v9, v11")
        A("v_cmp_ne_u32 vcc, 0, v16")
        A(f"s_cmp_gt_u32 s54, {limit}")
        A(f"s_cbranch_scc1 {fallback or done}")
        A(f"s_cbranch_vccnz {lp}")
        A.label(done)
    if "B" in exp: A("s_branch L_mode_done")
    poll_b(LOCAL_TRIES, "L_v0_far")
    A.label("L_v0_census")
    A(f"v_mov_b32_dpp v16, v8 row_ror:1 {DPPM}")
    A("v_xor_b32 v18, v8, v10")
    A("v_xor_b32 v16, v16, v8")
    A("v_or_b32 v16, v16, v18")
    A("v_cmp_ne_u32 vcc, 0, v16")
    A.nop(4)
    A("s_cbranch_vccz L_mode_done")
    A("s_mov_b64 exec, -1")
    A("s_mov_b32 s6, 2")
    clears(GSET, "sc1")
    A("s_waitcnt vmcnt(0)")
    A(f"s_add_u32 s68, s67, {M_BG2 - M_BL}")
    A("s_mov_b64 exec, 1")
    A(f"buffer_store_dwordx2 v[12:13], v5, s[12:15], s68 offen sc1")
    A("s_lshl_b32 s59, s4, 8"); A(f"s_add_u32 s59, s59, {M_BG2}")
    poll_b(TIMEOUT, None)
    A("s_branch L_mode_done")
    A.label("L_v0_far")
    A(f"s_add_u32 s59, s59, {M_BG - M_BL}")
    poll_b(TIMEOUT, None)
    A("s_branch L_v0_census")
    A.label("L_mode_done")
    A("s_mov_b64 exec, -1")
    A("v_mov_b32 v12, s6")
    A(f"ds_write_b32 v5, v12 offset:{F_MODE}")
    A("s_cmp_lg_u32 s5, 0"); A("s_cbranch_scc1 L_v0_nogb")
    A("v_mov_b32 v12, s7"); A("v_mov_b32 v13, s7")
    A("s_lshl_b32 s59, s4, 3")
    A("s_mov_b64 exec, 1")
    A(f"buffer_store_dwordx2 v[12:13], v5, s[12:15], s59 offen offset:{M_GB} sc1")
    A("s_mov_b64 exec, -1")
    A.label("L_v0_nogb")
    A.stamp(6)
    A.label("L_vmain")
    for r in list(range(8, 26)): A(f"v_mov_b32 v{r}, 0")
    A("v_mov_b32 v26, 0"); A("v_mov_b32 v27, 0")
    A("v_mov_b32 v7, 0xffff")
    A("v_mov_b32 v36, 0xffff0000")
    A("s_mov_b32 s62, 0x11111111"); A("s_mov_b32 s63, 0x11111111")
    A("s_mov_b32 s64, 0x22222222"); A("s_mov_b32 s65, 0x22222222")
    A("s_mov_b32 s66, 0x44444444"); A("s_mov_b32 s67, 0x44444444")
    A("s_mov_b32 s68, 0x88888888"); A("s_mov_b32 s69, 0x88888888")
    A("v_cndmask_b32 v26, v26, v7, s[62:63]"); A("v_cndmask_b32 v26, v26, v36, s[64:65]")
    A("v_cndmask_b32 v27, v27, v7, s[66:67]"); A("v_cndmask_b32 v27, v27, v36, s[68:69]")
    A("v_lshl_add_u32 v37, v2, 2, v3")
    A(f"v_mul_u32_u24 v37, {PSTR}, v37")
    A(f"s_mul_i32 s59, s60, {16*PSTR}")
    A("v_add_u32 v37, s59, v37")
    A("v_lshrrev_b32 v28, 3, v0"); A("v_and_b32 v29, 7, v0"); A("v_lshlrev_b32 v29, 4, v29")
    A("v_lshl_add_u32 v30, v28, 10, v29")
    A.srd(48, 24, 4096 * 1024)
    A("s_waitcnt vmcnt(0)")
    A("s_lshl_b32 s59, s60, 2")
    A("v_mov_b32 v38, s59")
    A.lds_wait(38, F_P, "ge", 1, 7, sleep=2)
    A.stamp(1)
    W = A.WV
    A("s_lshl_b32 s59, s4, 19"); A("s_lshl_b32 s61, s44, 17"); A("s_add_u32 s59, s59, s61")
    A("s_lshl_b32 s61, s60, 15"); A("s_add_u32 s59, s59, s61"); A("s_lshl_b32 s61, s45, 7"); A("s_add_u32 s59, s59, s61")
    A("s_lshl_b32 s62, s60, 12"); A(f"s_add_u32 s62, s62, {T_WO}")
    for i in range(4):
        A.dma(30, "s[48:51]", "s59", "s62")
        A("s_add_u32 s59, s59, 8192"); A("s_add_u32 s62, s62, 1024")
    def vload(i):
        r = VD + 4 * i
        A(f"buffer_load_dwordx4 v[{r}:{r+3}], v6, s[8:11], s58 offen offset:{(i % 4) * 1024} nt")
        if i % 4 == 3: A("s_add_u32 s58, s58, 4096")
    CHK = [i for i in range(W + 2, thr, 2)] if not s0 else []
    for i in range(s0 or 32):
        if i in CHK:
            if exact: A(f"ds_read_b32 v39, v5 offset:{F_ST}")
            else: A(f"ds_read_b32 v39, v5 offset:{F_Q}")
        A(f"s_waitcnt vmcnt({(WV3 if (WV3 and i >= thr) else W)-1})")
        if i == W: lds_signal_add(C_TAIL, 7)
        if i in CHK:
            A("s_waitcnt lgkmcnt(0)")
            A("v_readfirstlane_b32 s53, v39")
            A("s_cmp_lg_u32 s53, 0")
            A(f"s_cbranch_scc1 L_vu_{i}")
        vload(i)
    if not s0:
        A("s_branch L_v_issued")
        for i in range(CHK[0], 32):
            if i in CHK: A.label(f"L_vu_{i}")
            if WV2 < 40: A(f"s_waitcnt vmcnt({WV2-1})")
            vload(i)
        A.label("L_v_issued")
        lds_signal_add(F_CLR, 7)
        A.stamp(2)
    plan = {k: [] for k in range(32)}
    if s0:
        k = 0
        for i in range(s0, 32):
            plan[k].append(i)
            k = min(k + rate, i - WV2 + 1)
            k = max(k, 0)
    issued = s0 or 32
    if "S" in exp:
        A("s_waitcnt vmcnt(0)"); A.stamp(4); A.dump_stamps(9); A("s_endpgm")
    A.lds_wait(38, F_P, "ge", 2, 7)
    A.stamp(3)
    A(f"ds_read_b32 v39, v5 offset:{F_Q}")
    def preg(i):
        if i < 8: return 28 + i
        return VD + (i - 8)
    A(f"ds_read_b128 v[28:31], v37 offset:{PBUF}")
    A(f"ds_read_b128 v[32:35], v37 offset:{PBUF+16}")
    A("s_waitcnt lgkmcnt(0)")
    A("v_readfirstlane_b32 s6, v39")
    def xset(i): return 10 if i % 2 == 0 else 14
    def mkx(i):
        x = xset(i)
        A(f"v_and_b32 v{x}, v{preg(i)}, v26")
        A(f"v_and_b32 v{x+1}, v{preg(i)}, v27")
    mkx(0)
    for i in range(32):
        d = VD + 4 * i; x = xset(i)
        if i + 1 < 32:
            if i + 1 == 8: A("s_waitcnt lgkmcnt(0)")
            mkx(i + 1)
        else: A.nop(2)
        if i == 10:
            A("v_lshlrev_b32 v28, 5, v0"); A("s_lshl_b32 s59, s60, 11"); A("v_add_u32 v28, s59, v28")
            A("v_mov_b32 v29, 1")
            A("v_lshlrev_b32 v30, 3, v0"); A("s_lshl_b32 s59, s60, 9"); A("v_add_u32 v30, s59, v30")
            A("s_lshl_b32 s61, s6, 20")
            A(f"s_mul_i32 s59, s4, {GRP_STRIDE}"); A("s_add_u32 s61, s61, s59")
            A("s_lshl_b32 s59, s60, 14"); A("s_add_u32 s61, s61, s59")
            A("s_lshl_b32 s59, s5, 6"); A("s_add_u32 s61, s61, s59")
            A(f"s_add_u32 s61, s61, {SH_T1}")
            A("v_lshrrev_b32 v31, 3, v0"); A("v_lshlrev_b32 v31, 11, v31")
            A("v_and_b32 v32, 7, v0"); A("v_lshl_add_u32 v31, v32, 3, v31")
            if t1x4:
                A("v_lshlrev_b32 v30, 4, v0"); A("s_lshl_b32 s59, s60, 9"); A("v_add_u32 v30, s59, v30")
                A("v_lshrrev_b32 v31, 2, v0"); A("v_lshlrev_b32 v31, 11, v31"); A("v_lshl_add_u32 v31, v4, 4, v31")
        if i == 24 and not exact:
            A.lds_wait(5, F_ST, "lg", 0, 7, sleep=1)
            A("s_lshl_b32 s59, s60, 4"); A("v_mov_b32 v7, s59")
            A(f"ds_read_b128 v[32:35], v7 offset:{STG}")
        for li in plan[i]:
            A(f"s_waitcnt vmcnt({WV2-1})")
            vload(li); issued += 1
            if li == 31:
                lds_signal_add(F_CLR, 7); A.stamp(2)
        A(f"s_waitcnt vmcnt({issued - 1 - i})")
        A(f"v_mfma_f32_16x16x32_bf16 v[18:21], v[{x}:{x+3}], v[{d}:{d+3}], v[18:21]")
        A(f"v_mfma_f32_16x16x32_bf16 v[22:25], v[{x-2}:{x+1}], v[{d}:{d+3}], v[22:25]")
        if i == 6:
            for q in range(6):
                A(f"ds_read_b128 v[{VD+4*q}:{VD+4*q+3}], v37 offset:{PBUF + 32 + 16*q}")
    A.stamp(4)
    A.nop(7)
    A(f"ds_write_b128 v28, v[18:21] offset:{ORED}")
    A(f"ds_write_b128 v28, v[22:25] offset:{ORED+16}")
    A("s_mov_b64 exec, 1")
    A(f"ds_add_u32 v5, v29 offset:{F_OCNT}")
    A("s_mov_b64 exec, -1")
    A.lds_wait(5, F_OCNT, "ge", 4, 7, sleep=0)
    if t1x4:
        A("s_mov_b64 exec, 0xffffffff")
        for w in range(4):
            A(f"ds_read_b128 v[{40+4*w}:{43+4*w}], v30 offset:{ORED + 2048*w}")
        if exact:
            A("s_waitcnt lgkmcnt(2)")
            for k in range(4): A(f"v_add_f32 v{40+k}, v{40+k}, v{44+k}")
            A("s_waitcnt lgkmcnt(0)")
            for k in range(4): A(f"v_add_f32 v{48+k}, v{48+k}, v{52+k}")
            for k in range(4): A(f"v_add_f32 v{40+k}, v{40+k}, v{48+k}")
        else:
            for w in range(4):
                A(f"s_waitcnt lgkmcnt({3-w})")
                for k in range(4):
                    if w == 0: A(f"v_mul_f32 v{40+k}, v{40+k}, v32")
                    else: A(f"v_fmac_f32 v{40+k}, v{40+4*w+k}, v{32+w}")
        A.lstore("buffer_store_dwordx4 v[40:43], v31, s[12:15], s61 offen")
        A("s_mov_b64 exec, -1")
    else:
      for w in range(4):
        A(f"ds_read_b64 v[{40+2*w}:{41+2*w}], v30 offset:{ORED + 2048*w}")
      A("s_waitcnt lgkmcnt(0)")
    if t1x4: pass
    elif exact:
        A("v_add_f32 v40, v40, v42"); A("v_add_f32 v41, v41, v43")
        A("v_add_f32 v44, v44, v46"); A("v_add_f32 v45, v45, v47")
        A("v_add_f32 v40, v40, v44"); A("v_add_f32 v41, v41, v45")
    else:
        A("v_mul_f32 v40, v40, v32"); A("v_mul_f32 v41, v41, v32")
        for w in range(1, 4):
            A(f"v_fmac_f32 v40, v{40+2*w}, v{32+w}"); A(f"v_fmac_f32 v41, v{41+2*w}, v{32+w}")
    if not t1x4: A.lstore("buffer_store_dwordx2 v[40:41], v31, s[12:15], s61 offen")
    A.stamp(5)
    lds_signal_add(F_OCNT, 7)
    if stamps is True:
        A("s_waitcnt vmcnt(0)"); A.stamp(8)
    A.dump_stamps(9)
    A("s_endpgm")
    A.label("L_helper")
    A("s_setprio 3")
    A("v_lshlrev_b32 v6, 4, v0")
    A("v_lshlrev_b32 v7, 2, v0")
    A("s_cmp_lg_u32 s3, 0"); A("s_cbranch_scc1 L_h_noinit")
    A("ds_write_b32 v7, v5")
    A.label("L_h_noinit")
    A("v_lshrrev_b32 v8, 3, v0"); A("v_and_b32 v9, 7, v0"); A("v_lshlrev_b32 v9, 4, v9")
    A("s_movk_i32 s59, 6144")
    A("v_mad_u32_u24 v10, v8, s59, v9")
    A("v_lshl_add_u32 v11, v8, 13, v9")
    modjob()
    A("s_mov_b32 s65, s46")
    A("s_and_b32 s47, s46, 3")
    A("s_lshr_b32 s46, s46, 2")
    A("s_lshl_b32 s59, s47, 2"); A("s_add_u32 s59, s59, s3"); A(f"s_mul_i32 s59, s59, {32*6144}")
    A("s_lshl_b32 s60, s46, 7"); A("s_add_u32 s59, s59, s60")
    A("s_lshl_b32 s60, s44, 2"); A("s_add_u32 s60, s60, s3"); A("s_lshl_b32 s60, s60, 18")
    A("s_lshl_b32 s61, s4, 10"); A("s_add_u32 s60, s60, s61"); A("s_lshl_b32 s61, s45, 7"); A("s_add_u32 s60, s60, s61")
    A("s_lshl_b32 s62, s3, 12")
    A("s_lshl_b32 s66, s47, 8")
    A("s_lshl_b32 s67, s44, 8")
    A("s_waitcnt lgkmcnt(0)")
    A.srd(8, 36, 512 * 6144)
    A.srd(12, 42, WS_RECORDS)
    A.srd(48, 34, 1024)
    A("s_load_dword s7, s[42:43], 0")
    A("s_cmp_ge_u32 s65, 192"); A("s_cbranch_scc1 L_h_nomod1")
    A("buffer_load_dword v12, v7, s[48:51], s66 offen")
    A(f"s_add_u32 s63, s62, {T_MOD}")
    for i in range(4):
        A.dma(10, "s[8:11]", "s59", "s63")
        A(f"s_add_u32 s59, s59, {8*6144}"); A("s_add_u32 s63, s63, 1024")
    A.label("L_h_nomod1")
    A.srd(8, 22, 512 * 8192)
    A.srd(48, 16, 1024)
    A("buffer_load_dwordx4 v[152:155], v6, s[48:51], 0 offen")
    A("buffer_load_dword v156, v7, s[48:51], s67 offen")
    def wq_dma():
        A(f"s_add_u32 s63, s62, {T_WQ}")
        for i in range(4):
            A.dma(11, "s[8:11]", "s60", "s63")
            A("s_add_u32 s60, s60, 0x10000"); A("s_add_u32 s63, s63, 1024")
    A("s_barrier")
    if "H" in exp: wq_dma()
    if "H" in exp:
        A("s_waitcnt vmcnt(0)"); A.stamp(1); A.dump_stamps(15); A("s_endpgm")
    A("v_lshlrev_b32 v58, 10, v2"); A("v_lshl_add_u32 v58, v3, 7, v58"); A("v_lshl_add_u32 v58, v4, 3, v58")
    A("s_lshl_b32 s59, s3, 5"); A("v_add_u32 v58, s59, v58")
    A("v_lshlrev_b32 v112, 4, v2")
    A("s_lshl_b32 s59, s3, 8"); A(f"s_add_u32 s59, s59, {SBUF}")
    A("v_add_u32 v116, s59, v7")
    A("v_add_u32 v117, s59, v112")
    A("s_mov_b32 s68, 0x00010001"); A("s_mov_b32 s69, 0x00010001")
    def frags(dst, tile, nt):
        A(f"v_add_u32 v59, {tile}, v58")
        for t in range(nt):
            A(f"ds_read_b64_tr_b16 v[{dst+4*t}:{dst+4*t+1}], v59 offset:{4096*t}")
            A(f"ds_read_b64_tr_b16 v[{dst+4*t+2}:{dst+4*t+3}], v59 offset:{4096*t + 512}")
    def mfma_from_lds(vaddr, off, frag, nt, d=8):
        for t in range(nt): A(f"ds_read_b128 v[{24+4*t}:{27+4*t}], v{vaddr} offset:{off + 64*t}")
        A("s_waitcnt lgkmcnt(0)")
        for t in range(nt):
            A(f"v_mfma_f32_16x16x32_bf16 v[{d}:{d+3}], v[{frag+4*t}:{frag+4*t+3}], v[{24+4*t}:{27+4*t}], {'0' if t == 0 else f'v[{d}:{d+3}]'}")
    A("s_waitcnt lgkmcnt(0)")
    mktag()
    A("s_cmp_ge_u32 s65, 192"); A("s_cbranch_scc1 L_h_nomod2")
    A("s_waitcnt vmcnt(6)")
    A("v_lshlrev_b32 v13, 16, v12"); A("v_and_b32 v14, 0xffff0000, v12")
    for r in (13, 14): A(f"v_mul_f32 v{r+2}, 0xbfb8aa3b, v{r}")
    for r in (15, 16): A(f"v_exp_f32 v{r}, v{r}")
    A.nop(1)
    for r in (15, 16): A(f"v_add_f32 v{r}, 1.0, v{r}")
    for r in (15, 16): A(f"v_rcp_f32 v{r+2}, v{r}")
    A.nop(1)
    for r in (13, 14): A(f"v_mul_f32 v{r+6}, v{r}, v{r+4}")
    for r in (13, 14): A(f"v_fma_f32 v{r+8}, -v{r+6}, v{r+2}, v{r}")
    for r in (13, 14): A(f"v_fma_f32 v{r+8}, v{r+8}, v{r+4}, v{r+6}")
    for r in (13, 14):
        A(f"v_cmp_o_f32 vcc, v{r+8}, v{r+8}"); A.nop(2)
        A(f"v_cndmask_b32 v{r+8}, v{r+6}, v{r+8}, vcc")
    A("v_cvt_pk_bf16_f32 v13, v21, v22")
    A("ds_write_b32 v116, v13")
    A("s_waitcnt vmcnt(2)")
    lds_signal_add(C_MOD, 13)
    wq_dma()
    A.lds_wait(5, C_MOD, "ge", 4, 13, sleep=0)
    frags(64, T_MOD, 4)
    mfma_from_lds(117, 0, 64, 4)
    A(f"s_mul_i32 s59, s47, {3072*8}"); A("s_lshl_b32 s60, s46, 9"); A("s_add_u32 s59, s59, s60")
    A("s_lshl_b32 s60, s3, 7"); A("s_add_u32 s59, s59, s60"); A(f"s_add_u32 s59, s59, {M_MOD}")
    A("v_add_u32 v20, v116, v7")
    A("v_mov_b32 v17, s7"); A("v_mov_b32 v19, s7")
    A("s_mov_b64 exec, s[68:69]")
    A("ds_write_b128 v117, v[8:11]")
    A("s_mov_b64 exec, 0xff")
    A("ds_read_b64 v[12:13], v20")
    A("s_mov_b64 exec, -1")
    A("s_waitcnt lgkmcnt(0)")
    A("v_mov_b32 v16, v12"); A("v_mov_b32 v18, v13")
    A("s_mov_b64 exec, 0xff")
    A("buffer_store_dwordx4 v[16:19], v6, s[12:15], s59 offen sc1")
    A("s_mov_b64 exec, -1")
    A.stamp(1)
    A("s_waitcnt vmcnt(1)")
    A("s_branch L_h_wq_ok")
    A.label("L_h_nomod2")
    wq_dma()
    A.stamp(1)
    A("s_waitcnt vmcnt(0)")
    A.label("L_h_wq_ok")
    lds_signal_add(C_WQ, 13)
    def poll_mod(cols, vaddr, width, sleep):
        regs = []
        lp = A.poll_begin()
        A(f"s_sleep {sleep}")
        r = 120
        for ci, co in enumerate(cols):
            for p in range(4):
                A(f"s_mov_b32 s59, {M_MOD + p*3072*8 + co}")
                A(f"s_add_u32 s59, s59, s{vaddr[1]}")
                A(f"buffer_load_dwordx{width} v[{r}:{r+width-1}], v{vaddr[0]}, s[12:15], s59 offen sc1")
                regs.append(r); r += width
        A("s_waitcnt vmcnt(0)")
        A("v_mov_b32 v20, 0")
        for rr in regs:
            for t in range(1, width, 2):
                A(f"v_xor_b32 v21, s7, v{rr+t}"); A("v_or_b32 v20, v20, v21")
        A("v_cmp_ne_u32 vcc, 0, v20")
        A.poll_end(lp)
        return regs
    def sum4(dst, regs4, k):
        A(f"v_add_f32 v{dst}, v{regs4[0]+k}, v{regs4[1]+k}")
        A(f"v_add_f32 v{dst}, v{dst}, v{regs4[2]+k}")
        A(f"v_add_f32 v{dst}, v{dst}, v{regs4[3]+k}")
        A.rbf(dst, dst)
    A("s_lshl_b32 s63, s44, 10")
    A("s_cmp_lg_u32 s3, 0"); A("s_cbranch_scc1 L_h_waith")
    A.ln_stats(152, 20, 28, 29, 30, 31)
    if h_first: A(f"s_sleep {h_first}")
    regs = poll_mod([0, 512 * 8], (6, 63), 4, h_sleep)
    A.stamp(2)
    sum4(12, regs[0:4], 0); sum4(13, regs[0:4], 2)
    sum4(14, regs[4:8], 0); sum4(15, regs[4:8], 2)
    A("v_add_f32 v14, 1.0, v14"); A("v_add_f32 v15, 1.0, v15")
    A.rbf(14, 14); A.rbf(15, 15)
    A.modulate2(22, 156, 28, 29, 14, 15, 12, 13, 20)
    A(f"ds_write_b32 v7, v22 offset:{HBUF}")
    A("v_mov_b32 v13, 1")
    A(f"ds_write_b32 v5, v13 offset:{F_H}")
    A.label("L_h_waith")
    A.lds_wait(5, C_WQ, "ge", 4, 13, sleep=1)
    frags(64, T_WQ, 4)
    A.lds_wait(5, F_MODE, "lg", 0, 13, sleep=1)
    A("s_mov_b32 s6, s53")
    A("s_lshl_b32 s61, s6, 20")
    A(f"s_mul_i32 s59, s4, {GRP_STRIDE}"); A("s_add_u32 s61, s61, s59")
    A.lds_wait(5, F_H, "lg", 0, 13, sleep=1)
    mfma_from_lds(112, HBUF, 64, 4)
    A("s_lshl_b32 s59, s45, 2"); A("s_add_u32 s59, s59, s3")
    A("s_mov_b32 s46, s59")
    A("s_lshl_b32 s59, s59, 6"); A("s_lshl_b32 s60, s44, 11"); A("s_add_u32 s47, s59, s60")
    A("s_add_u32 s59, s47, s61"); A(f"s_add_u32 s59, s59, {SH_Q}")
    A("s_mov_b64 exec, s[68:69]")
    A.nop(2)
    A.lstore(f"buffer_store_dwordx4 v[8:11], v112, s[12:15], s59 offen")
    A("s_mov_b64 exec, -1")
    A.stamp(3)
    A("s_cmp_lg_u32 s3, 0"); A("s_cbranch_scc1 L_tailprep")
    A(f"s_add_u32 s59, s61, {SH_Q}"); A("s_add_u32 s60, s59, 4096")
    if q_first: A(f"s_sleep {q_first}")
    lp = A.poll_begin()
    if q_sleep: A(f"s_sleep {q_sleep}")
    for p in range(4):
        for hh in range(2):
            r = 120 + 8 * p + 4 * hh
            A(f"buffer_load_dwordx4 v[{r}:{r+3}], v6, s[12:15], {'s59' if p < 2 else 's60'} offen offset:{(p % 2) * 2048 + 1024 * hh} sc1")
    A("s_waitcnt vmcnt(0)")
    A("v_max3_u32 v21, v120, v121, v122")
    for r in range(123, 151, 2): A(f"v_max3_u32 v21, v21, v{r}, v{r+1}")
    A("v_max_u32 v21, v21, v151")
    A("v_cmp_eq_u32 vcc, -1, v21")
    A.poll_end(lp)
    for k in range(8):
        A(f"v_add_f32 v{120+k}, v{120+k}, v{128+k}")
        A(f"v_add_f32 v{120+k}, v{120+k}, v{136+k}")
        A(f"v_add_f32 v{120+k}, v{120+k}, v{144+k}")
    for k in range(4): A(f"v_cvt_pk_bf16_f32 v{8+k}, v{120+2*k}, v{121+2*k}")
    A("v_lshlrev_b32 v20, 3, v0")
    A(f"ds_write_b64 v20, v[8:9] offset:{QBUF}")
    A(f"ds_write_b64 v20, v[10:11] offset:{QBUF+512}")
    A("v_mov_b32 v12, s6")
    A(f"ds_write_b32 v5, v12 offset:{F_Q}")
    A.stamp(4)
    A.label("L_tailprep")
    A("s_cmp_lg_u32 s3, 1"); A("s_cbranch_scc1 L_tp1")
    regs = poll_mod([3 * 512 * 8, 4 * 512 * 8], (6, 63), 4, 16)
    sum4(108, regs[0:4], 0); sum4(109, regs[0:4], 2)
    sum4(110, regs[4:8], 0); sum4(111, regs[4:8], 2)
    A("v_add_f32 v110, 1.0, v110"); A("v_add_f32 v111, 1.0, v111")
    A.rbf(110, 110); A.rbf(111, 111)
    A(f"ds_write_b128 v6, v[108:111] offset:{SCB}")
    lds_signal_add(F_SC, 13)
    A.label("L_tp1")
    A("s_cmp_lg_u32 s3, 2"); A("s_cbranch_scc1 L_tp2")
    A("v_and_b32 v20, 1, v2"); A("v_lshlrev_b32 v20, 1, v20"); A("v_lshrrev_b32 v21, 1, v2"); A("v_or_b32 v20, v20, v21")
    A("v_add_u32 v20, s4, v20"); A("v_and_b32 v20, 3, v20"); A("v_lshl_add_u32 v20, v20, 2, v4")
    A("s_lshl_b32 s59, s5, 4"); A("v_add_u32 v20, s59, v20")
    A("v_lshlrev_b32 v23, 1, v20")
    A("v_lshlrev_b32 v22, 3, v20")
    A("buffer_load_ushort v106, v23, s[48:51], 0 offen")
    A("s_mov_b32 s62, 0")
    regs = poll_mod([2 * 512 * 8, 5 * 512 * 8], (22, 62), 2, 16)
    sum4(104, regs[0:4], 0); sum4(105, regs[4:8], 0)
    A("v_lshlrev_b32 v106, 16, v106")
    A("v_mov_b32 v107, s7")
    A(f"ds_write_b128 v6, v[104:107] offset:{RBUF}")
    lds_signal_add(F_SC, 13)
    A.label("L_tp2")
    A("s_cmp_lg_u32 s3, 3"); A("s_cbranch_scc1 L_tp3")
    A("s_mov_b64 exec, 0xf")
    lp = A.poll_begin()
    A("s_sleep 32")
    A(f"buffer_load_dwordx4 v[8:11], v6, s[12:15], 0 offen offset:{M_GB} sc1")
    A("s_waitcnt vmcnt(0)")
    A("v_xor_b32 v9, s7, v9"); A("v_xor_b32 v11, s7, v11"); A("v_or_b32 v9, v9, v11")
    A("v_cmp_ne_u32 vcc, 0, v9")
    A.poll_end(lp)
    A("s_mov_b64 exec, -1")
    lds_signal_add(F_SC, 13)
    A.label("L_tp3")
    A.lds_wait(5, F_SC, "ge", 3, 13, sleep=4)
    A(f"ds_read_b128 v[108:111], v6 offset:{SCB}")
    A.lds_wait(5, C_TAIL, "ge", 4, 13, sleep=4)
    frags(64, T_WO, 4)
    A("v_add_u32 v113, s67, v112")
    A("v_add_u32 v114, s67, v7")
    ffn_consts()
    A("s_mov_b32 s52, s57")
    A("s_lshl_b32 s62, s44, 3"); A("s_add_u32 s62, s62, s4"); A("s_lshl_b32 s62, s62, 6")
    A("s_lshl_b32 s63, s46, 14"); A("s_add_u32 s64, s62, s63"); A(f"s_add_u32 s64, s64, {M_X1}")
    A("s_lshl_b32 s63, s46, 11"); A("s_add_u32 s65, s62, s63"); A(f"s_add_u32 s65, s65, {M_X2}")
    A("v_lshlrev_b32 v118, 4, v4")
    A("v_lshrrev_b32 v115, 2, v0"); A("v_lshl_add_u32 v115, v115, 11, v118")
    A("s_lshl_b32 s59, s3, 2"); A("s_lshl_b64 s[26:27], 0xf, s59")
    A("s_add_u32 s47, s47, s61"); A(f"s_add_u32 s47, s47, {SH_GU}")
    A(f"s_add_u32 s62, s61, {SH_GU}"); A("s_add_u32 s63, s62, 4096")
    A("v_lshlrev_b32 v119, 1, v0"); A("s_lshl_b32 s59, s3, 8"); A(f"s_add_u32 s59, s59, {SBUF}"); A("v_add_u32 v119, s59, v119")
    A("s_waitcnt lgkmcnt(0)")
    A.stamp(6)
    A("v_lshrrev_b32 v24, 3, v0"); A("v_and_b32 v25, 7, v0"); A("v_lshlrev_b32 v25, 4, v25")
    A("v_lshl_add_u32 v26, v24, 10, v25")
    A("s_movk_i32 s59, 3584")
    A("v_mad_u32_u24 v27, v24, s59, v25")
    A.srd(48, 32, 1792 * 1024)
    A("s_cmp_lt_u32 s45, 4")
    A("s_cselect_b32 s8, s28, s30"); A("s_cselect_b32 s9, s29, s31"); A(f"s_mov_b32 s10, {hex(512*3584)}"); A("s_mov_b32 s11, 0x20000")
    A("s_lshl_b32 s59, s5, 8"); A(f"s_add_u32 s59, s59, {SH_GU}")
    A("v_add_u32 v28, s59, v6")
    A("s_lshl_b32 s59, s5, 6"); A("s_sub_u32 s59, s59, 256")
    A("v_add_u32 v29, s59, v6")
    A("v_cmp_gt_u32 vcc, 16, v0")
    A("s_lshl_b32 s59, s5, 11"); A("s_lshl_b32 s60, s3, 10"); A("s_add_u32 s59, s59, s60"); A(f"s_add_u32 s59, s59, {SH_T1}")
    A("v_cndmask_b32 v28, v29, v28, vcc")
    A("v_add_u32 v29, s59, v6")
    A.lds_wait(5, F_CLR, "ge", 20, 8, sleep=2)
    A("s_cmp_gt_u32 s3, 2"); A("s_cbranch_scc1 L_w_done")
    A("s_cmp_eq_u32 s3, 2"); A("s_cbranch_scc1 L_w_sh")
    A("buffer_load_dwordx4 v[32:35], v29, s[12:15], s61 offen sc1")
    A("s_branch L_w_done")
    A.label("L_w_sh")
    A("s_mov_b64 exec, 0xfffff")
    A("buffer_load_dwordx4 v[32:35], v28, s[12:15], s61 offen sc1")
    A("s_mov_b64 exec, -1")
    A.label("L_w_done")
    A("v_mov_b32 v120, v26"); A("v_mov_b32 v121, v27"); A("s_mov_b32 s66, s56")
    def tile_gu():
        A("s_and_b32 s60, s45, 3"); A("s_cmp_ge_u32 s60, s52"); A("s_cbranch_scc1 L_t_nogu")
        A("s_lshl_b32 s60, s60, 6"); A("s_add_u32 s60, s60, s66"); A("s_lshl_b32 s60, s60, 1")
        A("s_lshl_b32 s59, s44, 2"); A("s_add_u32 s59, s59, s3"); A(f"s_mul_i32 s59, s59, {32*3584}")
        A("s_add_u32 s59, s59, s60")
        A("s_lshl_b32 s60, s3, 12"); A(f"s_add_u32 s60, s60, {T_GU}")
        for i in range(4):
            A.dma(121, "s[8:11]", "s59", "s60")
            A(f"s_add_u32 s59, s59, {8*3584}"); A("s_add_u32 s60, s60, 1024")
        A.label("L_t_nogu")
    def tile_dn():
        A("s_cmp_ge_u32 s44, s52"); A("s_cbranch_scc1 L_t_nodn")
        A("s_lshl_b32 s59, s44, 6"); A("s_add_u32 s59, s59, s66"); A("s_lshl_b32 s60, s3, 4"); A("s_add_u32 s59, s59, s60")
        A("s_lshl_b32 s59, s59, 10"); A("s_lshl_b32 s60, s45, 7"); A("s_add_u32 s59, s59, s60")
        A("s_lshl_b32 s60, s3, 11"); A(f"s_add_u32 s60, s60, {T_DN}")
        for i in range(2):
            A.dma(120, "s[48:51]", "s59", "s60")
            A("s_add_u32 s59, s59, 8192"); A("s_add_u32 s60, s60, 1024")
        A.label("L_t_nodn")
    def tiles_done():
        A("s_waitcnt vmcnt(0)")
        lds_signal_add(C_TAIL, 8)
    if tmode in "AB": tile_gu()
    if tmode == "A": tile_dn(); tiles_done()
    A.lds_wait(5, F_OCNT, "ge", 8, 8, sleep=2)
    A("s_cmp_lt_u32 s44, s52"); A("s_cbranch_scc1 L_has_down")
    for r in range(8, 12): A(f"v_mov_b32 v{r}, 0")
    A("s_mov_b64 exec, 0xf")
    A("buffer_store_dwordx4 v[8:11], v6, s[12:15], s65 offen sc1")
    A("s_mov_b64 exec, -1")
    A.label("L_has_down")
    def xstore(sbase, voff, mask):
        A(f"v_mov_b32_dpp v9, v8 row_ror:12 {DPPM}")
        A(f"v_mov_b32_dpp v10, v8 row_ror:8 {DPPM}")
        A(f"v_mov_b32_dpp v11, v8 row_ror:4 {DPPM}")
        A(f"s_mov_b64 exec, {mask}")
        A(f"buffer_store_dwordx4 v[8:11], v{voff}, s[12:15], {sbase} offen sc1")
        A("s_mov_b64 exec, -1")
    A.lds_wait(5, F_R, "ge", 1, 8, sleep=spin)
    lp = A.poll_begin()
    for t in range(4):
        A(f"buffer_load_dwordx4 v[{24+4*t}:{27+4*t}], v113, s[12:15], s61 offen offset:{SH_AO + 64*t} sc1")
    A("s_waitcnt vmcnt(0)")
    for t in range(4):
        A(f"v_mfma_f32_16x16x32_bf16 v[8:11], v[{24+4*t}:{27+4*t}], v[{64+4*t}:{67+4*t}], {'0' if t == 0 else 'v[8:11]'}")
    A("v_pk_max_u16 v16, v24, v25")
    for r in range(26, 40): A(f"v_pk_max_u16 v16, v16, v{r}")
    A("v_lshrrev_b32 v17, 16, v16")
    A("v_max_u16 v16, v16, v17")
    A("v_cmp_eq_u16 vcc, -1, v16")
    A.poll_end(lp)
    xstore("s64", 115, "0xffffffff")
    lds_signal_add(C_WQ, 13)
    A.stamp(9)
    if tmode != "A":
        A.lds_wait(5, C_WQ, "ge", 8, 8, sleep=0)
        if tmode == "C": tile_gu()
        tile_dn(); tiles_done()
    A.lds_wait(5, C_TAIL, "ge", 8, 8, sleep=0)
    frags(80, T_GU, 4); frags(96, T_DN, 2)
    A.lds_wait(5, F_R, "ge", 2, 8, sleep=spin)
    A("s_and_b32 s59, s45, 3"); A("s_cmp_ge_u32 s59, s52"); A("s_cbranch_scc1 L_gu")
    lp = A.poll_begin()
    A(f"buffer_load_dwordx4 v[8:11], v6, s[12:15], s61 offen offset:{SH_AX2} sc1")
    A(f"buffer_load_dword v12, v114, s[12:15], s61 offen offset:{SH_AX2} sc1")
    A("s_waitcnt vmcnt(0)")
    A("v_pk_max_u16 v16, v8, v9"); A("v_pk_max_u16 v17, v10, v11"); A("v_pk_max_u16 v16, v16, v12"); A("v_pk_max_u16 v16, v16, v17")
    A("v_lshrrev_b32 v17, 16, v16")
    A("v_max_u16 v16, v16, v17")
    A("v_cmp_eq_u16 vcc, -1, v16")
    A.poll_end(lp)
    A.stamp(11)
    A.ln_stats(8, 24, 32, 33, 34, 35)
    A.modulate2(22, 12, 32, 33, 110, 111, 108, 109, 20)
    A("ds_write_b32 v116, v22")
    mfma_from_lds(117, 0, 80, 4)
    A("s_mov_b64 exec, s[68:69]")
    A.nop(6)
    A.lstore("buffer_store_dwordx4 v[8:11], v112, s[12:15], s47 offen")
    A("s_mov_b64 exec, -1")
    A.stamp(12)
    A.label("L_gu")
    A("s_cmp_ge_u32 s44, s52"); A("s_cbranch_scc1 L_hend")
    lp = A.poll_begin()
    for p in range(4):
        sb_ = "s62" if p < 2 else "s63"
        A(f"buffer_load_dword v{8+p}, v114, s[12:15], {sb_} offen offset:{(p % 2) * 2048} sc1")
        A(f"buffer_load_dword v{12+p}, v114, s[12:15], {sb_} offen offset:{(p % 2) * 2048 + 1024} sc1")
    A("s_waitcnt vmcnt(0)")
    A("v_max3_u32 v16, v8, v9, v10"); A("v_max3_u32 v16, v16, v11, v12"); A("v_max3_u32 v16, v16, v13, v14"); A("v_max_u32 v16, v16, v15")
    A("v_cmp_eq_u32 vcc, -1, v16")
    A("v_add_f32 v8, v8, v9"); A("v_add_f32 v12, v12, v13")
    A("v_add_f32 v8, v8, v10"); A("v_add_f32 v12, v12, v14")
    A("v_add_f32 v8, v8, v11"); A("v_add_f32 v12, v12, v15")
    A.poll_end(lp)
    A("v_cvt_pk_bf16_f32 v12, v8, v12")
    A("v_lshlrev_b32 v8, 16, v12"); A("v_and_b32 v12, 0xffff0000, v12")
    A("v_mul_f32 v9, v8, v8")
    A("v_mul_f32 v9, 0x3d372713, v9")
    A("v_fma_f32 v9, v9, v8, v8")
    A("v_mul_f32 v9, 0xc0135761, v9")
    A("v_exp_f32 v9, v9")
    A.nop(1)
    A("v_add_f32 v9, 1.0, v9")
    A("v_rcp_f32 v9, v9")
    A.nop(1)
    A("v_mul_f32 v8, v8, v9")
    A.rbf(8, 8)
    A("v_mul_f32 v8, v8, v12")
    A("v_cvt_pk_bf16_f32 v8, v8, v8")
    A("ds_write_b16 v119, v8")
    for t in range(2): A(f"ds_read_b128 v[{24+4*t}:{27+4*t}], v117 offset:{64*t}")
    A("s_waitcnt lgkmcnt(0)")
    for t in range(2):
        A(f"v_mfma_f32_16x16x32_bf16 v[8:11], v[{24+4*t}:{27+4*t}], v[{96+4*t}:{99+4*t}], {'0' if t == 0 else 'v[8:11]'}")
    A.nop(8)
    xstore("s65", 118, "s[26:27]")
    A.stamp(13)
    A.label("L_hend")
    lds_signal_add(C_WQ, 13)
    A.dump_stamps(14)
    A.label("L_exit")
    A("s_endpgm")
    A.L += A.tail
    A.L.append(".fill 4096, 4, 0xBF800000")
    body = "\n".join(A.L)
    src = HEADER + f"""; @launch grid=(256,1,1) block=(768,1,1) lds={LDS_BYTES}
.amdgcn_target "amdgcn-amd-amdhsa--gfx950"
.text
.globl {NAME}_kernel
.p2align 8
.type {NAME}_kernel,@function
{NAME}_kernel:
{body}
.section .rodata,"a"
.p2align 6
.amdhsa_kernel {NAME}_kernel
  .amdhsa_next_free_vgpr 168
  .amdhsa_next_free_sgpr 102
  .amdhsa_accum_offset 168
  .amdhsa_group_segment_fixed_size 0
  .amdhsa_kernarg_size 112
  .amdhsa_user_sgpr_count 2
  .amdhsa_user_sgpr_kernarg_segment_ptr 1
  .amdhsa_system_sgpr_workgroup_id_x 1
  .amdhsa_float_denorm_mode_32 3
  .amdhsa_float_denorm_mode_16_64 3
.end_amdhsa_kernel
"""
    open(path, "w").write(src)

if __name__ == "__main__":
    gen(sys.argv[1] if len(sys.argv) > 1 else "k.s", stamps=("stamps" in sys.argv))
```

```python
import sys
from gen_common import NAME, HEADER

M_E   = 0x00000
M_BL  = 0x01000
M_BG  = 0x02000
M_BG2 = 0x03000
M_MOD = 0x04000
M_GB  = 0x00800
M_X2  = 0x20000
M_X1  = 0x40000
LSET  = 0x100000
GSET  = 0x200000
GRP_STRIDE = 0x16000
SH_AO, SH_AX2, SH_ST, SH_Q, SH_GU, SH_T1 = 0, 1024, 4096, 8192, 16384, 24576
M_DBG = 0x800000
WS_RECORDS = 0x1000000
F_Q, F_R, F_MODE, F_CLR, F_P, F_OCNT, F_H, C_MOD, C_WQ, C_TAIL, C_ST, F_ST, F_SC = 0, 4, 8, 12, 16, 32, 36, 40, 44, 48, 52, 56, 60
STW, STG = 64, 192
QBUF, HBUF, SBUF, PBUF, ORED, SCB, RBUF = 256, 1280, 1536, 2560, 11776, 19968, 20992
PSTR = 144
T_DN, T_MOD, T_WQ, T_WO, T_GU = 22528, 30720, 47104, 63488, 79872
LDS_BYTES = 96256
LOCAL_TRIES = 256
TIMEOUT = 1 << 18

DPPM = "row_mask:0xf bank_mask:0xf"

class G:
    def __init__(self, stamps=False, WK=6, WV=6, wflags="nt"):
        self.L = []; self.n = 0; self.tail = []
        self.stamps = stamps; self.WK = WK; self.WV = WV; self.wflags = wflags
    def __call__(self, s): self.L.append("    " + s)
    def label(self, s): self.L.append(s + ":")
    def mark(self, name): self.L.append("@@" + name)
    def uniq(self, p): self.n += 1; return f"L_{p}_{self.n}"
    def nop(self, n): self(f"s_nop {n-1}")
    def stamp(self, k):
        if self.stamps == "ends" and k not in (0, 14): return
        if self.stamps: self(f"s_memrealtime s[{70+2*k}:{71+2*k}]")
    def dump_stamps(self, nst):
        if not self.stamps: return
        A = self
        if self.stamps == "ends" and nst != 15: return
        if self.stamps == "amp": return
        if self.stamps == "dbg":
            if nst != 15: return
            skip = A.uniq("nodbg")
            A("s_waitcnt vmcnt(0) lgkmcnt(0)")
            A("s_cmp_lg_u32 s2, 0"); A(f"s_cbranch_scc1 {skip}")
            A("s_mov_b64 exec, -1")
            for k in range(nst):
                A(f"s_sub_u32 s52, s{70+2*k}, s70")
                A(f"v_writelane_b32 v1, s52, {k}")
            A("v_lshlrev_b32 v2, 2, v0")
            A(f"s_mov_b64 exec, {hex((1 << nst) - 1)}")
            A("global_store_dword v2, v1, s[40:41]")
            A("s_waitcnt vmcnt(0)")
            A.label(skip)
            return
        A("s_waitcnt vmcnt(0) lgkmcnt(0)")
        A("s_mov_b64 exec, -1")
        for k in range(nst):
            A(f"v_writelane_b32 v1, s{70+2*k}, {k}")
        A("s_mul_i32 s52, s2, 12"); A("s_add_u32 s52, s52, s3"); A("s_lshl_b32 s52, s52, 6"); A(f"s_add_u32 s52, s52, {M_DBG}")
        A("v_lshlrev_b32 v2, 2, v0")
        A(f"s_mov_b64 exec, {hex((1 << nst) - 1)}")
        A("buffer_store_dword v1, v2, s[12:15], s52 offen")
        A("s_waitcnt vmcnt(0)")
    def srd(self, d, ptr, nbytes):
        A = self
        A(f"s_mov_b32 s{d}, s{ptr}"); A(f"s_mov_b32 s{d+1}, s{ptr+1}")
        A(f"s_mov_b32 s{d+2}, {hex(nbytes)}"); A(f"s_mov_b32 s{d+3}, 0x20000")
    def lstore(self, instr):
        A = self
        slow = A.uniq("slow"); back = A.uniq("back")
        A("s_cmp_eq_u32 s6, 1")
        A(f"s_cbranch_scc0 {slow}")
        A(instr)
        A.label(back)
        self.tail += [f"{slow}:", f"    {instr} sc1", f"    s_branch {back}"]
    def lds_wait(self, vaddr, off, cmp, val, vtmp, sleep=1):
        A = self
        lp = A.uniq("lw"); done = A.uniq("lwd")
        A("s_mov_b32 s54, 0")
        A.label(lp)
        A(f"ds_read_b32 v{vtmp}, v{vaddr} offset:{off}")
        A("s_add_u32 s54, s54, 1")
        A("s_waitcnt lgkmcnt(0)")
        A(f"v_readfirstlane_b32 s53, v{vtmp}")
        A(f"s_cmp_gt_u32 s54, {TIMEOUT*4}")
        A(f"s_cbranch_scc1 {done}")
        A(f"s_cmp_{cmp}_u32 s53, {val}")
        A(f"s_cbranch_scc1 {done}")
        if sleep: A(f"s_sleep {sleep}")
        A(f"s_branch {lp}")
        A.label(done)
    def ror_reduce(self, op, regs, steps=(8, 4, 2, 1)):
        A = self
        for k in steps:
            if len(regs) < 3: A.nop(3 - len(regs))
            for r in regs:
                A(f"v_{op}_f32_dpp v{r}, v{r}, v{r} row_ror:{k} {DPPM}")
    def rbf(self, d, s, t=None):
        self(f"v_cvt_pk_bf16_f32 v{d}, v{s}, v{s}")
        self(f"v_and_b32 v{d}, 0xffff0000, v{d}")
    def get_nonce(self, vz, vt):
        A = self
        lp = A.uniq("nonce"); done = A.uniq("nonced")
        A("s_mov_b32 s54, 0")
        A.label(lp)
        A(f"global_load_dword v{vt}, v{vz}, s[40:41] sc1")
        A("s_add_u32 s54, s54, 1")
        A("s_waitcnt vmcnt(0)")
        A(f"v_readfirstlane_b32 s7, v{vt}")
        A(f"s_cmp_gt_u32 s54, {TIMEOUT}")
        A(f"s_cbranch_scc1 {done}")
        A("s_cmp_eq_u32 s7, 0")
        A(f"s_cbranch_scc1 {lp}")
        A.label(done)
    def poll_begin(self):
        lp = self.uniq("poll")
        self("s_mov_b32 s54, 0")
        self.label(lp)
        return lp
    def poll_end(self, lp):
        A = self
        done = A.uniq("pd")
        A("s_add_u32 s54, s54, 1")
        A(f"s_cmp_gt_u32 s54, {TIMEOUT}")
        A(f"s_cbranch_scc1 {done}")
        A(f"s_cbranch_vccnz {lp}")
        A.label(done)
    def red32(self, voff, sbase, a, b, t, stamp=None, w=None):
        A = self
        lp = A.poll_begin()
        A(f"buffer_load_dwordx4 v[{a}:{a+3}], v{voff}, s[12:15], {sbase} offen sc1")
        A(f"buffer_load_dwordx4 v[{b}:{b+3}], v{voff}, s[12:15], {sbase} offen offset:1024 sc1")
        A("s_waitcnt vmcnt(0)")
        A(f"v_max3_u32 v{t}, v{a}, v{a+1}, v{a+2}")
        A(f"v_max3_u32 v{t}, v{t}, v{a+3}, v{b}")
        A(f"v_max3_u32 v{t}, v{t}, v{b+1}, v{b+2}")
        A(f"v_max_u32 v{t}, v{t}, v{b+3}")
        A(f"v_cmp_eq_u32 vcc, -1, v{t}")
        if w is None:
            for i in range(4): A(f"v_add_f32 v{a+i}, v{a+i}, v{b+i}")
        else:
            for i in range(4): A(f"v_mul_f32 v{a+i}, v{a+i}, v{w[0]}")
            for i in range(4): A(f"v_fmac_f32 v{a+i}, v{b+i}, v{w[1]}")
        A.poll_end(lp)
        if stamp is not None and self.stamps is True:
            A.stamp(stamp); A(f"s_mov_b32 s{70+2*(stamp+1)}, s54")
        A(f"v_permlane32_swap_b32 v{a}, v{a+1}")
        A(f"v_permlane32_swap_b32 v{a+2}, v{a+3}")
        A(f"v_add_f32 v{a}, v{a}, v{a+1}")
        A(f"v_add_f32 v{a+2}, v{a+2}, v{a+3}")
        A.nop(2)
        A(f"v_permlane16_swap_b32 v{a}, v{a+2}")
        A(f"v_add_f32 v{a}, v{a}, v{a+2}")
        A.ror_reduce("add", [a], steps=(8, 4))
    def red32p(self, voff, sbase, a, t, base, D, pace):
        A = self
        def issue(k):
            r = base + 8 * k
            A(f"buffer_load_dwordx4 v[{r}:{r+3}], v{voff}, s[12:15], {sbase} offen sc1")
            A(f"buffer_load_dwordx4 v[{r+4}:{r+7}], v{voff}, s[12:15], {sbase} offen offset:1024 sc1")
        lp = A.uniq("pp"); done = A.uniq("ppd")
        A("s_mov_b32 s54, 0")
        for k in range(D - 1):
            issue(k)
            if pace: A(f"s_sleep {pace}")
        A.label(lp)
        for k in range(D):
            r = base + 8 * k
            issue((k + D - 1) % D)
            A(f"s_waitcnt vmcnt({2 * (D - 1)})")
            A(f"v_max3_u32 v{t}, v{r}, v{r+1}, v{r+2}")
            A(f"v_max3_u32 v{t}, v{t}, v{r+3}, v{r+4}")
            A(f"v_max3_u32 v{t}, v{t}, v{r+5}, v{r+6}")
            A(f"v_max_u32 v{t}, v{t}, v{r+7}")
            A(f"v_cmp_eq_u32 vcc, -1, v{t}")
            for i in range(4): A(f"v_add_f32 v{a+i}, v{r+i}, v{r+4+i}")
            A(f"s_cbranch_vccz {done}")
            if pace: A(f"s_sleep {pace}")
        A("s_add_u32 s54, s54, 1")
        A(f"s_cmp_le_u32 s54, {TIMEOUT}")
        A(f"s_cbranch_scc1 {lp}")
        A.label(done)
        A.nop(1)
        A(f"v_permlane32_swap_b32 v{a}, v{a+1}")
        A(f"v_permlane32_swap_b32 v{a+2}, v{a+3}")
        A(f"v_add_f32 v{a}, v{a}, v{a+1}")
        A(f"v_add_f32 v{a+2}, v{a+2}, v{a+3}")
        A.nop(2)
        A(f"v_permlane16_swap_b32 v{a}, v{a+2}")
        A(f"v_add_f32 v{a}, v{a}, v{a+2}")
        A.ror_reduce("add", [a], steps=(8, 4))
    def ln_stats(self, x, e, vmean, vrden, t0, t1):
        A = self
        A(f"v_mov_b32 v{e}, 0x3f803f80")
        A(f"v_dot2_f32_bf16 v{t1}, v{x}, v{x}, 0")
        A(f"v_dot2_f32_bf16 v{t0}, v{x}, v{e}, 0")
        for i in range(1, 4):
            A(f"v_dot2_f32_bf16 v{t1}, v{x+i}, v{x+i}, v{t1}")
            A(f"v_dot2_f32_bf16 v{t0}, v{x+i}, v{e}, v{t0}")
        A.nop(3)
        A(f"v_permlane32_swap_b32 v{t0}, v{t1}")
        A(f"v_add_f32 v{t0}, v{t0}, v{t1}")
        A(f"v_mov_b32 v{t1}, v{t0}")
        A.nop(2)
        A(f"v_permlane16_swap_b32 v{t0}, v{t1}")
        A(f"v_add_f32 v{t0}, v{t0}, v{t1}")
        A.ror_reduce("add", [t0])
        A(f"v_mul_f32 v{t0}, 0x3b000000, v{t0}")
        A.nop(1)
        A(f"v_readlane_b32 s56, v{t0}, 0")
        A(f"v_readlane_b32 s57, v{t0}, 32")
        A.nop(1)
        A(f"v_mov_b32 v{t1}, s56")
        A(f"v_fma_f32 v{t0}, -v{t1}, v{t1}, s57")
        A(f"v_cvt_pk_bf16_f32 v{vmean}, v{t0}, v{t1}")
        A(f"v_lshlrev_b32 v{t0}, 16, v{vmean}")
        A(f"v_and_b32 v{vmean}, 0xffff0000, v{vmean}")
        A(f"v_max_f32 v{t0}, 0, v{t0}")
        A(f"v_add_f32 v{t0}, 0x3727c5ac, v{t0}")
        A.rbf(t0, t0)
        A(f"v_sqrt_f32 v{t0}, v{t0}")
        A.nop(1)
        A.rbf(t0, t0)
        A(f"v_rcp_f32 v{vrden}, v{t0}")
        A.nop(1)
    def modulate2(self, d, xp, vmean, vrden, c1a, c1b, sha, shb, t):
        A = self
        A(f"v_lshlrev_b32 v{t}, 16, v{xp}"); A(f"v_and_b32 v{t+1}, 0xffff0000, v{xp}")
        A(f"v_sub_f32 v{t}, v{t}, v{vmean}"); A(f"v_sub_f32 v{t+1}, v{t+1}, v{vmean}")
        for opa, opb in ((f"v_mul_f32 v{t}, v{vrden}, v{t}", f"v_mul_f32 v{t+1}, v{vrden}, v{t+1}"),
                         (f"v_mul_f32 v{t}, v{c1a}, v{t}", f"v_mul_f32 v{t+1}, v{c1b}, v{t+1}"),
                         (f"v_add_f32 v{t}, v{sha}, v{t}", f"v_add_f32 v{t+1}, v{shb}, v{t+1}")):
            A(f"v_cvt_pk_bf16_f32 v{d}, v{t}, v{t+1}")
            A(f"v_lshlrev_b32 v{t}, 16, v{d}"); A(f"v_and_b32 v{t+1}, 0xffff0000, v{d}")
            A(opa); A(opb)
        A(f"v_cvt_pk_bf16_f32 v{d}, v{t}, v{t+1}")
    def modulate(self, d, xv, vmean, vrden, c1, sh):
        A = self
        A(f"v_sub_f32 v{d}, v{xv}, v{vmean}")
        A.rbf(d, d)
        A(f"v_mul_f32 v{d}, v{d}, v{vrden}")
        A.rbf(d, d)
        A(f"v_mul_f32 v{d}, {c1}, v{d}")
        A.rbf(d, d)
        A(f"v_add_f32 v{d}, {sh}, v{d}")
    def silu8(self, c, s, t):
        A = self
        for i in range(4):
            A(f"v_lshlrev_b32 v{s+2*i}, 16, v{c+i}")
            A(f"v_and_b32 v{s+2*i+1}, 0xffff0000, v{c+i}")
        for i in range(8):
            A(f"v_mul_f32 v{t+i}, 0xbfb8aa3b, v{s+i}")
        for i in range(8): A(f"v_exp_f32 v{t+i}, v{t+i}")
        for i in range(8): A(f"v_add_f32 v{t+i}, 1.0, v{t+i}")
        for i in range(8): A(f"v_rcp_f32 v{t+i}, v{t+i}")
        for i in range(8): A(f"v_mul_f32 v{s+i}, v{s+i}, v{t+i}")
        for i in range(8): A.rbf(s + i, s + i)
    def dma(self, voff, srd, soff, ldsaddr_sgpr_or_imm):
        A = self
        A(f"s_mov_b32 m0, {ldsaddr_sgpr_or_imm}")
        A.nop(1)
        A(f"buffer_load_dwordx4 v{voff}, {srd}, {soff} offen {self.wflags} lds")


def gen(path, stamps=False, WK=5, WV=5, WV2=8, kpre=5, kgo=2, wflags="nt", h_sleep=4, exp="", exact=True, x2_sleep=0, late_tiles=True, t1x4=True, tlb=0, spin=0, warm=False, warm1=True, thr=24, WV3=0, tmode='A', st_sleep=16, h_first=30, q_first=0, q_sleep=0, s0=0, rate=2, diag='', xd=3, xpace=1, td=2, tpace=1, mj=1, wb='', layout=2, ksl=3, ents=(12, 16, 20, 24, 28), ilv=1, rot=None, grp=0):
    A = G(stamps, WK, WV, wflags)
    def lds_signal_add(cnt, vone):
        A(f"v_mov_b32 v{vone}, 1")
        A("s_mov_b64 exec, 1")
        A(f"ds_add_u32 v5, v{vone} offset:{cnt}")
        A("s_mov_b64 exec, -1")
    A.stamp(0)
    A("s_cmp_ge_u32 s2, 256")
    A("s_cbranch_scc1 L_exit")
    A("s_load_dwordx16 s[16:31], s[0:1], 0")
    A("s_load_dwordx8 s[32:39], s[0:1], 64")
    A("s_load_dwordx4 s[40:43], s[0:1], 96")
    A("v_lshrrev_b32 v1, 6, v0")
    A("v_and_b32 v0, 63, v0")
    A("s_and_b32 s4, s2, 7")
    A("v_readfirstlane_b32 s3, v1")
    A("s_lshr_b32 s5, s2, 3")
    A("v_lshrrev_b32 v2, 4, v0")
    A("v_bfe_u32 v3, v0, 2, 2")
    A("v_and_b32 v4, 3, v0")
    A("v_mov_b32 v5, 0")
    A("s_mov_b32 s6, 1")
    A("s_lshr_b32 s44, s5, 3")
    A("s_and_b32 s45, s5, 7")
    if grp:
        A("s_lshl_b32 s58, s4, 22"); A(f"s_lshr_b32 s59, s5, {grp}"); A(f"s_lshl_b32 s59, s59, {17 + grp}"); A("s_add_u32 s58, s58, s59")
        A(f"s_and_b32 s59, s5, {(1 << grp) - 1}"); A("s_lshl_b32 s59, s59, 12"); A("s_add_u32 s58, s58, s59")
    else:
        A("s_lshl_b32 s58, s4, 22"); A("s_lshl_b32 s59, s5, 17"); A("s_add_u32 s58, s58, s59")
    STEP = 4096 << grp
    if rot:
        A(f"s_mul_i32 s57, s5, {rot[0]}"); A(f"s_mul_i32 s59, s4, {rot[1]}"); A("s_add_u32 s57, s57, s59")
        A("s_and_b32 s57, s57, 31"); A(f"s_lshl_b32 s57, s57, {12 + grp}")
    if layout:
        A("s_cmp_ge_u32 s3, 8"); A("s_cbranch_scc1 L_vwave")
        A("s_cmp_ge_u32 s3, 4"); A("s_cbranch_scc1 L_kwave")
    else:
        A("s_cmp_lt_u32 s3, 4"); A("s_cbranch_scc1 L_helper")
        A("s_cmp_ge_u32 s3, 8"); A("s_cbranch_scc1 L_vwave")
    A.mark("K")
    A.label("L_kwave")
    def modjob():
        if mj == 1:
            rank_e = [0, 1, 2, 15, 3, 4, 5, 6]; rank_o = [0, 15, 1, 15, 2, 15, 3, 4]
            ve = sum(v << (4 * i) for i, v in enumerate(rank_e)); vo = sum(v << (4 * i) for i, v in enumerate(rank_o))
            A("s_bitcmp1_b32 s4, 0")
            A(f"s_mov_b32 s46, {hex(ve)}"); A(f"s_mov_b32 s47, {hex(vo)}")
            A("s_cselect_b32 s46, s47, s46"); A("s_cselect_b32 s47, 5, 7"); A("s_cselect_b32 s61, 28, 0")
            A("s_lshl_b32 s59, s45, 2"); A("s_lshr_b32 s46, s46, s59"); A("s_and_b32 s46, s46, 15")
            A("s_mul_i32 s47, s47, s44")
            A("s_lshr_b32 s59, s4, 1"); A("s_mul_i32 s59, s59, 48"); A("s_add_u32 s59, s59, s61"); A("s_add_u32 s59, s59, s47")
            A("s_cmp_eq_u32 s46, 15"); A("s_cselect_b32 s59, 240, s59"); A("s_add_u32 s46, s46, s59")
            return
        tab = [0, 4, 1, 15, 2, 5, 3, 15, 6, 7, 10, 15, 8, 9, 11, 15]
        val = sum(v << (4 * i) for i, v in enumerate(tab))
        A(f"s_mov_b32 s46, {hex(val & 0xffffffff)}"); A(f"s_mov_b32 s47, {hex(val >> 32)}")
        A("s_lshl_b32 s59, s4, 1"); A("s_lshr_b32 s61, s5, 4"); A("s_add_u32 s59, s59, s61"); A("s_lshl_b32 s59, s59, 2")
        A("s_lshr_b64 s[46:47], s[46:47], s59")
        A("s_and_b32 s46, s46, 15"); A("s_lshl_b32 s46, s46, 4"); A("s_and_b32 s59, s5, 15"); A("s_add_u32 s46, s46, s59")
    def ffn_consts():
        A("s_lshr_b32 s56, s4, 1"); A("s_mul_i32 s56, s56, 448"); A("s_and_b32 s57, s4, 1")
        A("s_lshl_b32 s59, s57, 8"); A("s_add_u32 s56, s56, s59"); A("s_sub_u32 s57, 4, s57")
    def mktag():
        A("s_mul_i32 s7, s7, 0x9e3779b1"); A("s_add_u32 s7, s7, 0x7f4a7c15")
    KD = 40
    if stamps is True: A("s_memtime s[82:83]")
    A("s_sub_u32 s60, s3, 4")
    A(f"s_lshl_b32 s59, s60, {15 if not ilv else (10 if ilv == 1 else 12)}"); A("s_add_u32 s58, s58, s59")
    A("v_lshlrev_b32 v6, 8, v3")
    A("v_lshl_add_u32 v6, v2, 6, v6")
    A("v_lshl_add_u32 v6, v4, 4, v6")
    A("v_add_u32 v1, s58, v6")
    A("s_waitcnt lgkmcnt(0)")
    A.srd(8, 18, 0x2000000)
    W = A.WK
    if kpre == 0:
        A("s_barrier"); A.srd(12, 42, WS_RECORDS)
    for i in range(32):
        r = KD + 4 * i
        if ilv == 1:
            if rot:
                A(f"buffer_load_dwordx4 v[{r}:{r+3}], v1, s[8:11], s57 offen nt")
                A(f"s_add_u32 s57, s57, {STEP}"); A(f"s_and_b32 s57, s57, {hex(32 * STEP - 1)}")
            else:
                A(f"buffer_load_dwordx4 v[{r}:{r+3}], v6, s[8:11], s58 offen nt")
                A(f"s_add_u32 s58, s58, {STEP}")
        else:
            A(f"buffer_load_dwordx4 v[{r}:{r+3}], v6, s[8:11], s58 offen offset:{(i % 4) * 1024} nt")
            if i % 4 == 3: A(f"s_add_u32 s58, s58, {4096 if not ilv else 16384}")
        if ksl and i == 1: A(f"s_sleep {ksl}")
        if i == kpre - 1:
            A("s_barrier")
            A.srd(12, 42, WS_RECORDS)
        if i >= W - 1 and i != 31: A(f"s_waitcnt vmcnt({W-1})")
        if diag == "kprog":
            if i == kpre - 1: A.stamp(8)
            if i in (W - 1, 8, 12, 16, 24): A.stamp({W - 1: 9, 8: 10, 12: 11, 16: 12, 24: 13}[i])
    A(f"s_waitcnt vmcnt({kgo})")
    A("s_lshl_b32 s59, s60, 2")
    A("v_mov_b32 v30, s59")
    A("v_mov_b32 v7, 1")
    A(f"ds_write_b32 v30, v7 offset:{F_P}")
    A.stamp(1)
    A("v_lshlrev_b32 v7, 8, v4"); A("v_lshl_add_u32 v7, v2, 6, v7"); A("v_lshl_add_u32 v7, v3, 4, v7")
    if "S" in exp:
        A("s_waitcnt vmcnt(0)"); A.stamp(2); A.dump_stamps(6); A("s_endpgm")
    A.lds_wait(5, F_Q, "lg", 0, 8)
    A("s_mov_b32 s6, s53")
    A(f"ds_read_b128 v[8:11], v7 offset:{QBUF}")
    A.stamp(2)
    A("s_waitcnt vmcnt(0) lgkmcnt(0)")
    C = 12
    TS = 20
    def extract(i):
        d = KD + 4 * i; c = C + i // 4; jj = i % 4
        first = True
        for b in range(4):
            n = 4 * ((jj - b) & 3)
            ctl = f"row_ror:{n}" if n else "quad_perm:[0,1,2,3]"
            if first: A(f"v_mov_b32_dpp v{c}, v{d+b} {ctl} row_mask:0xf bank_mask:{hex(1 << jj)}")
            else: A(f"v_add_f32_dpp v{c}, v{d+b}, v{c} {ctl} row_mask:0xf bank_mask:{hex(1 << jj)}")
            first = False
    for i in range(32):
        d = KD + 4 * i
        A(f"v_mfma_f32_16x16x32_bf16 v[{d}:{d+3}], v[{d}:{d+3}], v[8:11], 0")
        if i >= 3: extract(i - 3)
        elif i == 2: A.nop(6)
    A.nop(4); extract(29); extract(30); extract(31)
    for p in range(4):
        a, b = C + 2 * p, C + 2 * p + 1
        A(f"v_cvt_pk_bf16_f32 v{TS}, v{a}, v{b}")
        A(f"v_lshlrev_b32 v{a}, 16, v{TS}")
        A(f"v_and_b32 v{b}, 0xffff0000, v{TS}")
        A(f"v_mul_f32 v{a}, 0x3db504f3, v{a}")
        A(f"v_mul_f32 v{b}, 0x3db504f3, v{b}")
        A(f"v_cvt_pk_bf16_f32 v{TS}, v{a}, v{b}")
        A(f"v_lshlrev_b32 v{a}, 16, v{TS}")
        A(f"v_and_b32 v{b}, 0xffff0000, v{TS}")
    def head_allreduce(op, r, t):
        A.nop(2); A(f"v_{op}_f32_dpp v{r}, v{r}, v{r} row_ror:4 {DPPM}")
        A.nop(2); A(f"v_{op}_f32_dpp v{r}, v{r}, v{r} row_ror:8 {DPPM}")
        for sw in ("16", "32"):
            A(f"v_mov_b32 v{t}, v{r}"); A.nop(2)
            A(f"v_permlane{sw}_swap_b32 v{r}, v{t}")
            A(f"v_{op}_f32 v{r}, v{r}, v{t}")
    MW, LW = 22, 23
    A(f"v_max3_f32 v{MW}, v{C}, v{C+1}, v{C+2}")
    A(f"v_max3_f32 v{MW}, v{MW}, v{C+3}, v{C+4}")
    A(f"v_max3_f32 v{MW}, v{MW}, v{C+5}, v{C+6}")
    A(f"v_max_f32 v{MW}, v{MW}, v{C+7}")
    head_allreduce("max", MW, TS)
    for c in range(8): A(f"v_sub_f32 v{C+c}, v{C+c}, v{MW}")
    for c in range(8): A(f"v_mul_f32 v{C+c}, 0x3fb8aa3b, v{C+c}")
    for c in range(8): A(f"v_exp_f32 v{C+c}, v{C+c}")
    def write_p(scale):
        A("v_lshl_add_u32 v25, v2, 2, v4")
        A(f"v_mul_u32_u24 v25, {PSTR}, v25")
        A("v_lshl_add_u32 v25, v3, 2, v25")
        A(f"s_mul_i32 s59, s60, {16*PSTR}")
        A("v_add_u32 v25, s59, v25")
        for c in range(8):
            if scale: A(f"v_mul_f32 v{C+c}, v{C+c}, v{MW}")
            A(f"v_cvt_pk_bf16_f32 v{32+c}, v{C+c}, v{C+c}")
            A(f"ds_write_b32 v25, v{32+c} offset:{PBUF + 16*c}")
        A("v_mov_b32 v7, 2")
        A(f"ds_write_b32 v30, v7 offset:{F_P}")
    if not exact: write_p(False); A.stamp(5)
    A.nop(1)
    A(f"v_add_f32 v{LW}, v{C}, v{C+1}")
    for c in range(2, 8): A(f"v_add_f32 v{LW}, v{LW}, v{C+c}")
    head_allreduce("add", LW, TS)
    A("s_lshl_b32 s59, s60, 5")
    A("v_lshl_add_u32 v24, v4, 3, s59")
    A("v_mov_b32 v25, 1")
    A("s_mov_b64 exec, 0xf")
    A(f"ds_write_b64 v24, v[{MW}:{LW}] offset:{STW}")
    A("s_mov_b64 exec, 1")
    A(f"ds_add_rtn_u32 v25, v5, v25 offset:{C_ST}")
    A("s_mov_b64 exec, -1")
    A("v_lshlrev_b32 v24, 3, v4"); A("v_lshl_add_u32 v26, v3, 5, v24")
    A("s_lshl_b32 s61, s6, 20")
    A(f"s_mul_i32 s59, s4, {GRP_STRIDE}"); A("s_add_u32 s61, s61, s59"); A(f"s_add_u32 s61, s61, {SH_ST}")
    A("s_waitcnt lgkmcnt(0)")
    A("v_readfirstlane_b32 s53, v25")
    A("s_cmp_lg_u32 s53, 3")
    A("s_cbranch_scc1 L_k_waitst")
    S = KD
    A(f"ds_read_b64 v[{S}:{S+1}], v26 offset:{STW}")
    A("s_waitcnt lgkmcnt(0)")
    A(f"v_max_f32_dpp v{S+2}, v{S}, v{S} row_ror:4 {DPPM}")
    A(f"v_mov_b32 v31, v{S}")
    A.nop(1)
    A(f"v_max_f32_dpp v{S+2}, v{S+2}, v{S+2} row_ror:8 {DPPM}")
    A(f"v_sub_f32 v{S}, v{S}, v{S+2}")
    A(f"v_mul_f32 v{S}, 0x3fb8aa3b, v{S}")
    A(f"v_exp_f32 v{S}, v{S}")
    A.nop(1)
    A(f"v_mul_f32 v{S+3}, v{S}, v{S+1}")
    A.nop(2)
    A(f"v_add_f32_dpp v{S+3}, v{S+3}, v{S+3} row_ror:4 {DPPM}")
    A.nop(2)
    A(f"v_add_f32_dpp v{S+3}, v{S+3}, v{S+3} row_ror:8 {DPPM}")
    A("s_lshr_b32 s59, s5, 1"); A("s_lshl_b32 s59, s59, 6"); A("s_and_b32 s62, s5, 1"); A("s_lshl_b32 s62, s62, 3")
    A("s_add_u32 s59, s59, s62"); A("s_add_u32 s59, s59, s61")
    A("v_lshlrev_b32 v27, 4, v0")
    A("s_mov_b64 exec, 0xf")
    A.lstore(f"buffer_store_dwordx2 v[{S+2}:{S+3}], v27, s[12:15], s59 offen")
    A("s_mov_b64 exec, -1")
    A.stamp(3)
    if not exact:
        A("v_lshlrev_b32 v24, 4, v4"); A("v_lshl_add_u32 v24, v3, 2, v24")
        A("v_mov_b32 v25, 1")
        A("s_mov_b64 exec, 0xffff")
        A(f"ds_write_b32 v24, v{S} offset:{STG}")
        A(f"ds_write_b32 v5, v25 offset:{F_ST}")
        A("s_mov_b64 exec, -1")
        A("s_branch L_k_waitst")
    lp = A.poll_begin()
    A(f"buffer_load_dwordx4 v[{S}:{S+3}], v27, s[12:15], s61 offen sc1")
    A("s_waitcnt vmcnt(0)")
    A(f"v_max3_u32 v{TS}, v{S}, v{S+1}, v{S+2}")
    A(f"v_max_u32 v{TS}, v{TS}, v{S+3}")
    A(f"v_cmp_eq_u32 vcc, -1, v{TS}")
    A.poll_end(lp)
    MG, LG = 28, 29
    A(f"v_max_f32 v{MG}, v{S}, v{S+2}")
    head_allreduce("max", MG, TS)
    for p in range(2): A(f"v_sub_f32 v{S+2*p}, v{S+2*p}, v{MG}")
    for p in range(2): A(f"v_mul_f32 v{S+2*p}, 0x3fb8aa3b, v{S+2*p}")
    for p in range(2): A(f"v_exp_f32 v{S+2*p}, v{S+2*p}")
    A.nop(1)
    A(f"v_mul_f32 v{LG}, v{S}, v{S+1}")
    A(f"v_fmac_f32 v{LG}, v{S+2}, v{S+3}")
    head_allreduce("add", LG, TS)
    A(f"v_rcp_f32 v{LG}, v{LG}")
    A("v_mov_b32 v25, 1")
    if exact:
        A("s_mov_b64 exec, 0xf")
        A(f"ds_write_b64 v24, v[{MG}:{LG}] offset:{STG}")
        A(f"ds_write_b32 v5, v25 offset:{F_ST}")
        A("s_mov_b64 exec, -1")
        A("s_branch L_k_havest")
        A.label("L_k_waitst")
        A.stamp(3)
        A.lds_wait(5, F_ST, "lg", 0, 25, sleep=1)
        A(f"ds_read_b64 v[{MG}:{LG}], v24 offset:{STG}")
        A("s_waitcnt lgkmcnt(0)")
        A.label("L_k_havest")
        A.stamp(4)
        A(f"v_sub_f32 v{MW}, v{MW}, v{MG}")
        A(f"v_mul_f32 v{MW}, 0x3fb8aa3b, v{MW}")
        A(f"v_exp_f32 v{MW}, v{MW}")
        A.nop(1)
        A(f"v_mul_f32 v{MW}, v{MW}, v{LG}")
    else:
        A(f"v_sub_f32 v31, v31, v{MG}")
        A(f"v_mul_f32 v31, 0x3fb8aa3b, v31")
        A(f"v_exp_f32 v31, v31")
        A("v_lshlrev_b32 v24, 4, v4"); A("v_lshl_add_u32 v24, v3, 2, v24")
        A(f"v_mul_f32 v31, v31, v{LG}")
        A("s_mov_b64 exec, 0xffff")
        A(f"ds_write_b32 v24, v31 offset:{STG}")
        A(f"ds_write_b32 v5, v25 offset:{F_ST}")
        A("s_mov_b64 exec, -1")
        A.stamp(4)
        A.label("L_k_waitst")
    if exact: write_p(True)
    A("s_waitcnt lgkmcnt(0)")
    if exact: A.stamp(5)
    A("s_cmp_eq_u32 s60, 0"); A("s_cbranch_scc1 L_reducer")
    A.dump_stamps(14 if diag == "kprog" else 6)
    A("s_endpgm")
    A.label("L_reducer")
    A("s_setprio 3")
    A("v_lshlrev_b32 v6, 4, v0")
    A("v_and_b32 v20, 1, v2"); A("v_lshlrev_b32 v20, 1, v20"); A("v_lshrrev_b32 v21, 1, v2"); A("v_or_b32 v20, v20, v21")
    A("v_lshl_add_u32 v21, v4, 2, v20")
    A("v_add_u32 v22, s4, v20"); A("v_and_b32 v22, 3, v22"); A("v_lshl_add_u32 v22, v22, 2, v4")
    A("s_lshl_b32 s59, s5, 4")
    A("v_add_lshl_u32 v21, v21, s59, 1")
    A("v_add_lshl_u32 v22, v22, s59, 1")
    A("s_lshl_b32 s61, s6, 20")
    A(f"s_mul_i32 s59, s4, {GRP_STRIDE}"); A("s_add_u32 s61, s61, s59")
    A("s_lshl_b32 s59, s5, 11")
    A("s_add_u32 s62, s59, s61"); A(f"s_add_u32 s62, s62, {SH_T1}")
    A(f"s_add_u32 s64, s59, {M_X2}")
    A("s_lshl_b32 s63, s2, 11"); A(f"s_add_u32 s63, s63, {M_X1}")
    A("s_mov_b32 s50, 0x000f000f"); A("s_mov_b32 s51, 0x000f000f")
    A.srd(8, 38, 1024)
    A.lds_wait(5, F_SC, "ge", 3, 8, sleep=4)
    A(f"ds_read_b128 v[24:27], v6 offset:{RBUF}")
    A("v_mov_b32 v28, 1"); A("v_mov_b32 v29, 2")
    if not exact:
        A("v_lshrrev_b32 v30, 3, v0"); A("v_lshlrev_b32 v30, 6, v30")
        A("v_and_b32 v31, 1, v3"); A("v_lshl_add_u32 v30, v31, 3, v30")
        A("s_lshl_b32 s59, s44, 4"); A("s_add_u32 s59, s59, s61"); A(f"s_add_u32 s59, s59, {SH_ST}")
        lp = A.poll_begin()
        A(f"s_sleep {st_sleep}")
        A("buffer_load_dwordx2 v[40:41], v30, s[12:15], s59 offen sc1")
        A("buffer_load_dwordx2 v[42:43], v30, s[12:15], s59 offen offset:512 sc1")
        A("s_waitcnt vmcnt(0)")
        A("v_max3_u32 v20, v40, v41, v42"); A("v_max_u32 v20, v20, v43")
        A("v_cmp_eq_u32 vcc, -1, v20")
        A.poll_end(lp)
        A("v_max_f32 v44, v40, v42")
        head_allreduce("max", 44, 20)
        A("v_sub_f32 v40, v40, v44"); A("v_sub_f32 v42, v42, v44")
        A("v_mul_f32 v40, 0x3fb8aa3b, v40"); A("v_mul_f32 v42, 0x3fb8aa3b, v42")
        A("v_exp_f32 v40, v40"); A("v_exp_f32 v42, v42")
        A.nop(1)
        A("v_mul_f32 v45, v40, v41"); A("v_fmac_f32 v45, v42, v43")
        head_allreduce("add", 45, 20)
        A("v_rcp_f32 v45, v45")
        A.nop(1)
        A("v_mul_f32 v40, v40, v45"); A("v_mul_f32 v42, v42, v45")
        A.stamp(4)
    if tlb:
        A(f"v_lshlrev_b32 v30, {tlb}, v0")
        A(f"v_add_u32 v31, {M_X1 + 1920}, v30")
        A("v_add_u32 v30, s61, v30"); A("v_add_u32 v30, 3072, v30")
        lp = A.uniq("tw"); dn = A.uniq("twd")
        A("s_mov_b32 s54, 0")
        A.label(lp)
        A(f"s_mov_b64 exec, {hex((1 << ((GRP_STRIDE >> tlb))) - 1)}")
        A("buffer_load_dword v32, v30, s[12:15], 0 offen sc1")
        A(f"s_mov_b64 exec, {hex((1 << (0x20000 >> tlb)) - 1)}")
        A("buffer_load_dword v33, v31, s[12:15], 0 offen sc1")
        A("s_mov_b64 exec, 1")
        A("buffer_load_dword v34, v5, s[8:11], 0 offen sc1")
        A("s_mov_b64 exec, -1")
        for k in range(4):
            A(f"ds_read_b32 v8, v5 offset:{F_OCNT}")
            A("s_waitcnt lgkmcnt(0)")
            A("v_readfirstlane_b32 s53, v8")
            A("s_cmp_ge_u32 s53, 1"); A(f"s_cbranch_scc1 {dn}")
            A("s_sleep 4")
        A("s_add_u32 s54, s54, 1"); A(f"s_cmp_lt_u32 s54, {TIMEOUT}"); A("s_waitcnt vmcnt(0)"); A(f"s_cbranch_scc1 {lp}")
        A.label(dn)
    def warm_loop(loads, thresh, vtmp):
        lp = A.uniq("wl"); dn = A.uniq("wld")
        A("s_mov_b32 s54, 0")
        A.label(lp)
        for ld in loads: A(ld)
        for k in range(3):
            A(f"ds_read_b32 v{vtmp}, v5 offset:{F_OCNT}")
            A("s_waitcnt lgkmcnt(0)")
            A(f"v_readfirstlane_b32 s53, v{vtmp}")
            A(f"s_cmp_ge_u32 s53, {thresh}"); A(f"s_cbranch_scc1 {dn}")
            A("s_sleep 6")
        A("s_add_u32 s54, s54, 1"); A(f"s_cmp_lt_u32 s54, {TIMEOUT}"); A("s_waitcnt vmcnt(0)"); A(f"s_cbranch_scc1 {lp}")
        A.label(dn)
    if warm:
        warm_loop(["buffer_load_dwordx4 v[32:35], v6, s[12:15], s62 offen sc1", "buffer_load_dwordx4 v[36:39], v6, s[12:15], s62 offen offset:1024 sc1"], 1, 8)
    A.lds_wait(5, F_OCNT, "ge", 8, 8, sleep=0)
    A.stamp(7)
    if stamps is True: A("s_memtime s[88:89]")
    if td and exact: A.red32p(6, "s62", 8, 16, 48, td, tpace)
    else: A.red32(6, "s62", 8, 12, 16, stamp=11, w=None if exact else (40, 42))
    A("v_cvt_pk_bf16_f32 v8, v8, v8")
    A("s_mov_b64 exec, s[50:51]")
    A.lstore(f"buffer_store_short v8, v21, s[12:15], s61 offen offset:{SH_AO}")
    A("s_mov_b64 exec, -1")
    A(f"ds_write_b32 v5, v28 offset:{F_R}")
    A.stamp(8)
    A.lds_wait(5, C_WQ, "ge", 8, 8, sleep=0)
    A("s_waitcnt vmcnt(0)")
    if xd: A.red32p(6, "s63", 8, 16, 48, xd, xpace)
    else: A.red32(6, "s63", 8, 12, 16)
    A.rbf(8, 8)
    A("v_mul_f32 v8, v24, v8")
    A.rbf(8, 8)
    A("v_add_f32 v8, v26, v8")
    A("v_cvt_pk_bf16_f32 v8, v8, v8")
    A("s_mov_b64 exec, s[50:51]")
    A.lstore(f"buffer_store_short v8, v22, s[12:15], s61 offen offset:{SH_AX2}")
    A("s_mov_b64 exec, -1")
    A(f"ds_write_b32 v5, v29 offset:{F_R}")
    A("v_and_b32 v26, 0xffff0000, v8")
    A.stamp(10)
    if "c" in wb:
        A("s_cmp_lg_u32 s5, 31"); A("s_cbranch_scc1 L_nowbc")
        A("buffer_wbl2 sc1")
        A.label("L_nowbc")
    A("s_cmp_lg_u32 s45, s4"); A("s_cbranch_scc1 L_rend")
    A.lds_wait(5, C_WQ, "ge", 12, 8, sleep=0)
    if xd: A("s_waitcnt vmcnt(0)"); A.red32p(6, "s64", 8, 16, 48, xd, xpace)
    else: A.red32(6, "s64", 8, 12, 16)
    A.rbf(8, 8)
    A("v_mul_f32 v8, v25, v8")
    A.rbf(8, 8)
    A("v_add_f32 v8, v26, v8")
    A("v_cvt_pk_bf16_f32 v8, v8, v8")
    A("s_mov_b64 exec, s[50:51]")
    A("buffer_store_short v8, v22, s[8:11], 0 offen")
    A("s_mov_b64 exec, -1")
    A("s_cmp_lg_u32 s2, 0"); A("s_cbranch_scc1 L_rend")
    A("s_mov_b64 exec, 1")
    A("buffer_store_dword v27, v5, s[12:15], 0 offen")
    A("s_mov_b64 exec, -1")
    if diag == "endsleep":
        for _ in range(4): A("s_sleep 127")
    if diag.startswith("amp"):
        k = int(diag[3:])
        A("s_memrealtime s[98:99]")
        A("s_waitcnt lgkmcnt(0)")
        A(f"s_sub_u32 s52, s{70+2*k}, s70")
        A("s_add_u32 s52, s52, s98")
        A.label("L_amp")
        A("s_memrealtime s[54:55]")
        A("s_waitcnt lgkmcnt(0)")
        A("s_sub_u32 s53, s52, s54")
        A("s_cmp_gt_i32 s53, 0")
        A("s_cbranch_scc1 L_amp")
    A.label("L_rend")
    A.stamp(14)
    if stamps is True: A("s_memtime s[96:97]")
    A.dump_stamps(15)
    A("s_endpgm")
    A.mark("V1")
    A.label("L_vwave")
    VD = 40
    A("s_sub_u32 s60, s3, 8")
    A(f"s_lshl_b32 s59, s60, {15 if not ilv else (10 if ilv == 1 else 12)}"); A("s_add_u32 s58, s58, s59")
    A("v_lshlrev_b32 v6, 4, v0")
    A("v_add_u32 v1, s58, v6")
    A("s_cmp_eq_u32 s60, 1"); A("s_cbranch_scc0 L_vnopf")
    A("s_getpc_b64 s[62:63]")
    A.label("L_pc_ref")
    A(f"s_sub_u32 s62, s62, L_pc_ref-{NAME}_kernel")
    A("s_subb_u32 s63, s63, 0")
    A("v_lshlrev_b32 v7, 7, v0")
    A("s_lshl_b32 s59, s5, 10")
    A("v_add_u32 v7, s59, v7")
    A("s_mov_b64 exec, 0xff")
    A("global_load_dword v40, v7, s[62:63]")
    A("s_mov_b64 exec, -1")
    A.label("L_vnopf")
    A("s_waitcnt lgkmcnt(0)")
    A.srd(8, 20, 0x2000000)
    A.srd(12, 42, WS_RECORDS)
    if "N" not in exp:
        A("s_cmp_eq_u32 s60, 0"); A("s_cbranch_scc1 L_v0")
    A.label("L_vbar")
    if "a" in wb:
        A("s_cmp_lg_u32 s60, 2"); A("s_cbranch_scc1 L_nowb")
        A("s_cmp_lg_u32 s5, 0"); A("s_cbranch_scc1 L_nowb")
        A("buffer_wbl2 sc1")
        A.label("L_nowb")
    A("s_barrier")
    A("s_branch L_vmain")
    A.label("L_v0")
    def clears(setbase, fl):
        for r in range(8, 12): A(f"v_mov_b32 v{r}, -1")
        A(f"s_mul_i32 s61, s4, {GRP_STRIDE}"); A(f"s_add_u32 s61, s61, {setbase}")
        A("s_lshl_b32 s62, s5, 11"); A("s_add_u32 s62, s62, s61"); A(f"s_add_u32 s62, s62, {SH_T1}")
        A("s_mul_i32 s63, s5, 768"); A("s_add_u32 s63, s63, s61")
        A(f"buffer_store_dwordx4 v[8:11], v6, s[12:15], s62 offen {fl}")
        A(f"buffer_store_dwordx4 v[8:11], v6, s[12:15], s62 offen offset:1024 {fl}")
        A("s_mov_b32 s64, -1"); A("s_mov_b32 s65, 0xffff")
        A("s_mov_b64 exec, s[64:65]")
        A(f"buffer_store_dwordx4 v[8:11], v6, s[12:15], s63 offen {fl}")
        A("s_mov_b64 exec, -1")
    A("s_load_dword s7, s[42:43], 0")
    clears(LSET, "")
    A("s_lshl_b32 s64, s2, 11"); A(f"s_add_u32 s64, s64, {M_X1}")
    A("buffer_store_dwordx4 v[8:11], v6, s[12:15], s64 offen sc1")
    A("buffer_store_dwordx4 v[8:11], v6, s[12:15], s64 offen offset:1024 sc1")
    A("s_cmp_lg_u32 s45, s4"); A("s_cbranch_scc1 L_v0_nox")
    A("s_lshl_b32 s64, s5, 11"); A(f"s_add_u32 s64, s64, {M_X2}")
    A("buffer_store_dwordx4 v[8:11], v6, s[12:15], s64 offen sc1")
    A("buffer_store_dwordx4 v[8:11], v6, s[12:15], s64 offen offset:1024 sc1")
    A.label("L_v0_nox")
    A("s_getreg_b32 s66, hwreg(HW_REG_XCC_ID)")
    A("s_barrier")
    A("s_branch L_v0b")
    A.mark("V2")
    A.label("L_v0b")
    A("s_waitcnt vmcnt(0) lgkmcnt(0)")
    A.stamp(7)
    mktag()
    A("v_mov_b32 v13, 16")
    A("s_mov_b64 exec, 1")
    A(f"ds_add_u32 v5, v13 offset:{F_CLR}")
    A("s_mov_b64 exec, -1")
    A("v_mov_b32 v12, s66"); A("v_mov_b32 v13, s7")
    A("s_lshl_b32 s59, s4, 8"); A(f"s_add_u32 s59, s59, {M_BL}")
    A("s_lshl_b32 s61, s5, 3"); A("s_add_u32 s67, s61, s59")
    A(f"s_add_u32 s68, s67, {M_BG - M_BL}")
    A("s_mov_b64 exec, 1")
    A(f"buffer_store_dwordx2 v[12:13], v5, s[12:15], s67 offen")
    A(f"buffer_store_dwordx2 v[12:13], v5, s[12:15], s68 offen sc1")
    def poll_b(limit, fallback):
        lp = A.uniq("pb"); done = A.uniq("pbd")
        A("s_mov_b64 exec, 0xffff")
        A("s_mov_b32 s54, 0")
        A.label(lp)
        A("s_sleep 2")
        A(f"buffer_load_dwordx4 v[8:11], v6, s[12:15], s59 offen sc1")
        A("s_add_u32 s54, s54, 1")
        A("s_waitcnt vmcnt(0)")
        A("v_xor_b32 v9, s7, v9"); A("v_xor_b32 v11, s7, v11"); A("v_or_b32 v16, v9, v11")
        A("v_cmp_ne_u32 vcc, 0, v16")
        A(f"s_cmp_gt_u32 s54, {limit}")
        A(f"s_cbranch_scc1 {fallback or done}")
        A(f"s_cbranch_vccnz {lp}")
        A.label(done)
    if "B" in exp: A("s_branch L_mode_done")
    poll_b(LOCAL_TRIES, "L_v0_far")
    A.label("L_v0_census")
    A(f"v_mov_b32_dpp v16, v8 row_ror:1 {DPPM}")
    A("v_xor_b32 v18, v8, v10")
    A("v_xor_b32 v16, v16, v8")
    A("v_or_b32 v16, v16, v18")
    A("v_cmp_ne_u32 vcc, 0, v16")
    A.nop(4)
    A("s_cbranch_vccz L_mode_done")
    A("s_mov_b64 exec, -1")
    A("s_mov_b32 s6, 2")
    clears(GSET, "sc1")
    A("s_waitcnt vmcnt(0)")
    A(f"s_add_u32 s68, s67, {M_BG2 - M_BL}")
    A("s_mov_b64 exec, 1")
    A(f"buffer_store_dwordx2 v[12:13], v5, s[12:15], s68 offen sc1")
    A("s_lshl_b32 s59, s4, 8"); A(f"s_add_u32 s59, s59, {M_BG2}")
    poll_b(TIMEOUT, None)
    A("s_branch L_mode_done")
    A.label("L_v0_far")
    A(f"s_add_u32 s59, s59, {M_BG - M_BL}")
    poll_b(TIMEOUT, None)
    A("s_branch L_v0_census")
    A.label("L_mode_done")
    A("s_mov_b64 exec, -1")
    A("v_mov_b32 v12, s6")
    A(f"ds_write_b32 v5, v12 offset:{F_MODE}")
    A("s_cmp_lg_u32 s5, 0"); A("s_cbranch_scc1 L_v0_nogb")
    A("v_mov_b32 v12, s7"); A("v_mov_b32 v13, s7")
    A("s_lshl_b32 s59, s4, 3")
    A("s_mov_b64 exec, 1")
    A(f"buffer_store_dwordx2 v[12:13], v5, s[12:15], s59 offen offset:{M_GB} sc1")
    A("s_mov_b64 exec, -1")
    A.label("L_v0_nogb")
    A.stamp(6)
    A.label("L_vmain")
    for r in list(range(8, 26)): A(f"v_mov_b32 v{r}, 0")
    A("v_mov_b32 v26, 0"); A("v_mov_b32 v27, 0")
    A("v_mov_b32 v7, 0xffff")
    A("v_mov_b32 v36, 0xffff0000")
    A("s_mov_b32 s62, 0x11111111"); A("s_mov_b32 s63, 0x11111111")
    A("s_mov_b32 s64, 0x22222222"); A("s_mov_b32 s65, 0x22222222")
    A("s_mov_b32 s66, 0x44444444"); A("s_mov_b32 s67, 0x44444444")
    A("s_mov_b32 s68, 0x88888888"); A("s_mov_b32 s69, 0x88888888")
    A("v_cndmask_b32 v26, v26, v7, s[62:63]"); A("v_cndmask_b32 v26, v26, v36, s[64:65]")
    A("v_cndmask_b32 v27, v27, v7, s[66:67]"); A("v_cndmask_b32 v27, v27, v36, s[68:69]")
    A("v_lshl_add_u32 v37, v2, 2, v3")
    A(f"v_mul_u32_u24 v37, {PSTR}, v37")
    A(f"s_mul_i32 s59, s60, {16*PSTR}")
    A("v_add_u32 v37, s59, v37")
    A("v_lshrrev_b32 v28, 3, v0"); A("v_and_b32 v29, 7, v0"); A("v_lshlrev_b32 v29, 4, v29")
    A("v_lshl_add_u32 v30, v28, 10, v29")
    A.srd(48, 24, 4096 * 1024)
    A("s_waitcnt vmcnt(0)")
    A("s_lshl_b32 s59, s60, 2")
    A("v_mov_b32 v38, s59")
    A.lds_wait(38, F_P, "ge", 1, 7, sleep=2)
    A.stamp(1)
    W = A.WV
    A("s_lshl_b32 s59, s4, 19"); A("s_lshl_b32 s61, s44, 17"); A("s_add_u32 s59, s59, s61")
    A("s_lshl_b32 s61, s60, 15"); A("s_add_u32 s59, s59, s61"); A("s_lshl_b32 s61, s45, 7"); A("s_add_u32 s59, s59, s61")
    A("s_lshl_b32 s62, s60, 12"); A(f"s_add_u32 s62, s62, {T_WO}")
    for i in range(4):
        A.dma(30, "s[48:51]", "s59", "s62")
        A("s_add_u32 s59, s59, 8192"); A("s_add_u32 s62, s62, 1024")
    def vload(i):
        r = VD + 4 * i
        if ilv == 1:
            if rot:
                A(f"buffer_load_dwordx4 v[{r}:{r+3}], v1, s[8:11], s57 offen nt")
                A(f"s_add_u32 s57, s57, {STEP}"); A(f"s_and_b32 s57, s57, {hex(32 * STEP - 1)}")
            else:
                A(f"buffer_load_dwordx4 v[{r}:{r+3}], v6, s[8:11], s58 offen nt")
                A(f"s_add_u32 s58, s58, {STEP}")
        else:
            A(f"buffer_load_dwordx4 v[{r}:{r+3}], v6, s[8:11], s58 offen offset:{(i % 4) * 1024} nt")
            if i % 4 == 3: A(f"s_add_u32 s58, s58, {4096 if not ilv else 16384}")
    ENT = list(ents)
    for i in range(32):
        if i in ENT: A(f"ds_read_b32 v39, v38 offset:{F_P}")
        A(f"s_waitcnt vmcnt({W-1})")
        if i == W: lds_signal_add(C_TAIL, 7)
        if i in ENT:
            A("s_waitcnt lgkmcnt(0)")
            A("v_readfirstlane_b32 s53, v39")
            A("s_cmp_ge_u32 s53, 2")
            A(f"s_cbranch_scc1 L_vp_{i}")
        vload(i)
    lds_signal_add(F_CLR, 7)
    A.stamp(2)
    if "S" in exp:
        A("s_waitcnt vmcnt(0)"); A.stamp(4); A.dump_stamps(9); A("s_endpgm")
    A.lds_wait(38, F_P, "ge", 2, 7)
    def preg(i):
        if i < 8: return 28 + i
        return VD + (i - 8)
    def xset(i): return 10 if i % 2 == 0 else 14
    def mkx(i):
        x = xset(i)
        A(f"v_and_b32 v{x}, v{preg(i)}, v26")
        A(f"v_and_b32 v{x+1}, v{preg(i)}, v27")
    def pvpath(s0_):
        plan = {k: [] for k in range(32)}
        nleft = 32 - s0_
        if nleft:
            r = max(1, -(-(32 - WV2) // nleft))
            k = 0
            burst = max(0, WV2 - W)
            for n, i in enumerate(range(s0_, 32)):
                plan[k].append(i)
                if n >= burst: k = max(k, min(k + r, i - WV2 + 1))
        issued = s0_
        A.stamp(3)
        A(f"ds_read_b32 v39, v5 offset:{F_Q}")
        A(f"ds_read_b128 v[28:31], v37 offset:{PBUF}")
        A(f"ds_read_b128 v[32:35], v37 offset:{PBUF+16}")
        for li in plan[0]:
            A(f"s_waitcnt vmcnt({WV2-1})")
            vload(li); issued += 1
            if li == 31: lds_signal_add(F_CLR, 7); A.stamp(2)
        plan[0] = []
        A("s_waitcnt lgkmcnt(0)")
        A("v_readfirstlane_b32 s6, v39")
        mkx(0)
        for i in range(32):
            d = VD + 4 * i; x = xset(i)
            if i + 1 < 32:
                if i + 1 == 8: A("s_waitcnt lgkmcnt(0)")
                mkx(i + 1)
            else: A.nop(2)
            for li in plan[i]:
                A(f"s_waitcnt vmcnt({WV2-1})")
                vload(li); issued += 1
                if li == 31: lds_signal_add(F_CLR, 7); A.stamp(2)
            A(f"s_waitcnt vmcnt({issued - 1 - i})")
            A(f"v_mfma_f32_16x16x32_bf16 v[18:21], v[{x}:{x+3}], v[{d}:{d+3}], v[18:21]")
            A(f"v_mfma_f32_16x16x32_bf16 v[22:25], v[{x-2}:{x+1}], v[{d}:{d+3}], v[22:25]")
            if i == 6:
                for q in range(6):
                    A(f"ds_read_b128 v[{VD+4*q}:{VD+4*q+3}], v37 offset:{PBUF + 32 + 16*q}")
            if i == 10:
                A("v_lshlrev_b32 v28, 5, v0"); A("s_lshl_b32 s59, s60, 11"); A("v_add_u32 v28, s59, v28")
                A("v_mov_b32 v29, 1")
                A("s_lshl_b32 s61, s6, 20")
                A(f"s_mul_i32 s59, s4, {GRP_STRIDE}"); A("s_add_u32 s61, s61, s59")
                A("s_lshl_b32 s59, s60, 14"); A("s_add_u32 s61, s61, s59")
                A("s_lshl_b32 s59, s5, 6"); A("s_add_u32 s61, s61, s59")
                A(f"s_add_u32 s61, s61, {SH_T1}")
                A("v_lshlrev_b32 v30, 4, v0"); A("s_lshl_b32 s59, s60, 9"); A("v_add_u32 v30, s59, v30")
                A("v_lshrrev_b32 v31, 2, v0"); A("v_lshlrev_b32 v31, 11, v31"); A("v_lshl_add_u32 v31, v4, 4, v31")
        assert issued == 32
    assert exact and t1x4
    pvpath(32)
    A("s_branch L_pv_done")
    for e in ENT:
        A.label(f"L_vp_{e}")
        pvpath(e)
        if e != ENT[-1]: A("s_branch L_pv_done")
    A.label("L_pv_done")
    A.stamp(4)
    A.nop(7)
    A(f"ds_write_b128 v28, v[18:21] offset:{ORED}")
    A(f"ds_write_b128 v28, v[22:25] offset:{ORED+16}")
    A("s_mov_b64 exec, 1")
    A(f"ds_add_u32 v5, v29 offset:{F_OCNT}")
    A("s_mov_b64 exec, -1")
    A.lds_wait(5, F_OCNT, "ge", 4, 7, sleep=0)
    if t1x4:
        A("s_mov_b64 exec, 0xffffffff")
        for w in range(4):
            A(f"ds_read_b128 v[{40+4*w}:{43+4*w}], v30 offset:{ORED + 2048*w}")
        if exact:
            A("s_waitcnt lgkmcnt(2)")
            for k in range(4): A(f"v_add_f32 v{40+k}, v{40+k}, v{44+k}")
            A("s_waitcnt lgkmcnt(0)")
            for k in range(4): A(f"v_add_f32 v{48+k}, v{48+k}, v{52+k}")
            for k in range(4): A(f"v_add_f32 v{40+k}, v{40+k}, v{48+k}")
        else:
            for w in range(4):
                A(f"s_waitcnt lgkmcnt({3-w})")
                for k in range(4):
                    if w == 0: A(f"v_mul_f32 v{40+k}, v{40+k}, v32")
                    else: A(f"v_fmac_f32 v{40+k}, v{40+4*w+k}, v{32+w}")
        A.lstore("buffer_store_dwordx4 v[40:43], v31, s[12:15], s61 offen")
        A("s_mov_b64 exec, -1")
    else:
      for w in range(4):
        A(f"ds_read_b64 v[{40+2*w}:{41+2*w}], v30 offset:{ORED + 2048*w}")
      A("s_waitcnt lgkmcnt(0)")
    if t1x4: pass
    elif exact:
        A("v_add_f32 v40, v40, v42"); A("v_add_f32 v41, v41, v43")
        A("v_add_f32 v44, v44, v46"); A("v_add_f32 v45, v45, v47")
        A("v_add_f32 v40, v40, v44"); A("v_add_f32 v41, v41, v45")
    else:
        A("v_mul_f32 v40, v40, v32"); A("v_mul_f32 v41, v41, v32")
        for w in range(1, 4):
            A(f"v_fmac_f32 v40, v{40+2*w}, v{32+w}"); A(f"v_fmac_f32 v41, v{41+2*w}, v{32+w}")
    if not t1x4: A.lstore("buffer_store_dwordx2 v[40:41], v31, s[12:15], s61 offen")
    A.stamp(5)
    lds_signal_add(F_OCNT, 7)
    if stamps is True:
        A("s_waitcnt vmcnt(0)"); A.stamp(8)
    A.dump_stamps(9)
    A("s_endpgm")
    A.mark("H1")
    A.label("L_helper")
    A("s_setprio 3")
    A("v_lshlrev_b32 v6, 4, v0")
    A("v_lshlrev_b32 v7, 2, v0")
    A("s_cmp_lg_u32 s3, 0"); A("s_cbranch_scc1 L_h_noinit")
    A("ds_write_b32 v7, v5")
    A.label("L_h_noinit")
    A("v_lshrrev_b32 v8, 3, v0"); A("v_and_b32 v9, 7, v0"); A("v_lshlrev_b32 v9, 4, v9")
    A("s_movk_i32 s59, 6144")
    A("v_mad_u32_u24 v10, v8, s59, v9")
    A("v_lshl_add_u32 v11, v8, 13, v9")
    modjob()
    A("s_mov_b32 s65, s46")
    A("s_and_b32 s47, s46, 3")
    A("s_lshr_b32 s46, s46, 2")
    A("s_lshl_b32 s59, s47, 2"); A("s_add_u32 s59, s59, s3"); A(f"s_mul_i32 s59, s59, {32*6144}")
    A("s_lshl_b32 s60, s46, 7"); A("s_add_u32 s59, s59, s60")
    A("s_lshl_b32 s60, s44, 2"); A("s_add_u32 s60, s60, s3"); A("s_lshl_b32 s60, s60, 18")
    A("s_lshl_b32 s61, s4, 10"); A("s_add_u32 s60, s60, s61"); A("s_lshl_b32 s61, s45, 7"); A("s_add_u32 s60, s60, s61")
    A("s_lshl_b32 s62, s3, 12")
    A("s_lshl_b32 s66, s47, 8")
    A("s_lshl_b32 s67, s44, 8")
    A("s_waitcnt lgkmcnt(0)")
    A.srd(8, 36, 512 * 6144)
    A.srd(12, 42, WS_RECORDS)
    A.srd(48, 34, 1024)
    A("s_load_dword s7, s[42:43], 0")
    A("s_cmp_ge_u32 s65, 192"); A("s_cbranch_scc1 L_h_nomod1")
    A("buffer_load_dword v12, v7, s[48:51], s66 offen")
    A(f"s_add_u32 s63, s62, {T_MOD}")
    for i in range(4):
        A.dma(10, "s[8:11]", "s59", "s63")
        A(f"s_add_u32 s59, s59, {8*6144}"); A("s_add_u32 s63, s63, 1024")
    A.label("L_h_nomod1")
    A.srd(8, 22, 512 * 8192)
    A.srd(48, 16, 1024)
    A("buffer_load_dwordx4 v[152:155], v6, s[48:51], 0 offen")
    A("buffer_load_dword v156, v7, s[48:51], s67 offen")
    def wq_dma():
        A(f"s_add_u32 s63, s62, {T_WQ}")
        for i in range(4):
            A.dma(11, "s[8:11]", "s60", "s63")
            A("s_add_u32 s60, s60, 0x10000"); A("s_add_u32 s63, s63, 1024")
    A("s_barrier")
    A("s_branch L_h2")
    A.mark("H2")
    A.label("L_h2")
    if "H" in exp: wq_dma()
    if "H" in exp:
        A("s_waitcnt vmcnt(0)"); A.stamp(1); A.dump_stamps(15); A("s_endpgm")
    A("v_lshlrev_b32 v58, 10, v2"); A("v_lshl_add_u32 v58, v3, 7, v58"); A("v_lshl_add_u32 v58, v4, 3, v58")
    A("s_lshl_b32 s59, s3, 5"); A("v_add_u32 v58, s59, v58")
    A("v_lshlrev_b32 v112, 4, v2")
    A("s_lshl_b32 s59, s3, 8"); A(f"s_add_u32 s59, s59, {SBUF}")
    A("v_add_u32 v116, s59, v7")
    A("v_add_u32 v117, s59, v112")
    A("s_mov_b32 s68, 0x00010001"); A("s_mov_b32 s69, 0x00010001")
    def frags(dst, tile, nt):
        A(f"v_add_u32 v59, {tile}, v58")
        for t in range(nt):
            A(f"ds_read_b64_tr_b16 v[{dst+4*t}:{dst+4*t+1}], v59 offset:{4096*t}")
            A(f"ds_read_b64_tr_b16 v[{dst+4*t+2}:{dst+4*t+3}], v59 offset:{4096*t + 512}")
    def mfma_from_lds(vaddr, off, frag, nt, d=8):
        for t in range(nt): A(f"ds_read_b128 v[{24+4*t}:{27+4*t}], v{vaddr} offset:{off + 64*t}")
        A("s_waitcnt lgkmcnt(0)")
        for t in range(nt):
            A(f"v_mfma_f32_16x16x32_bf16 v[{d}:{d+3}], v[{frag+4*t}:{frag+4*t+3}], v[{24+4*t}:{27+4*t}], {'0' if t == 0 else f'v[{d}:{d+3}]'}")
    A("s_waitcnt lgkmcnt(0)")
    mktag()
    A("s_cmp_ge_u32 s65, 192"); A("s_cbranch_scc1 L_h_nomod2")
    A("s_waitcnt vmcnt(6)")
    A("v_lshlrev_b32 v13, 16, v12"); A("v_and_b32 v14, 0xffff0000, v12")
    for r in (13, 14): A(f"v_mul_f32 v{r+2}, 0xbfb8aa3b, v{r}")
    for r in (15, 16): A(f"v_exp_f32 v{r}, v{r}")
    A.nop(1)
    for r in (15, 16): A(f"v_add_f32 v{r}, 1.0, v{r}")
    for r in (15, 16): A(f"v_rcp_f32 v{r+2}, v{r}")
    A.nop(1)
    for r in (13, 14): A(f"v_mul_f32 v{r+6}, v{r}, v{r+4}")
    for r in (13, 14): A(f"v_fma_f32 v{r+8}, -v{r+6}, v{r+2}, v{r}")
    for r in (13, 14): A(f"v_fma_f32 v{r+8}, v{r+8}, v{r+4}, v{r+6}")
    for r in (13, 14):
        A(f"v_cmp_o_f32 vcc, v{r+8}, v{r+8}"); A.nop(2)
        A(f"v_cndmask_b32 v{r+8}, v{r+6}, v{r+8}, vcc")
    A("v_cvt_pk_bf16_f32 v13, v21, v22")
    A("ds_write_b32 v116, v13")
    A("s_waitcnt vmcnt(2)")
    lds_signal_add(C_MOD, 13)
    wq_dma()
    A.lds_wait(5, C_MOD, "ge", 4, 13, sleep=0)
    frags(64, T_MOD, 4)
    mfma_from_lds(117, 0, 64, 4)
    A(f"s_mul_i32 s59, s47, {3072*8}"); A("s_lshl_b32 s60, s46, 9"); A("s_add_u32 s59, s59, s60")
    A("s_lshl_b32 s60, s3, 7"); A("s_add_u32 s59, s59, s60"); A(f"s_add_u32 s59, s59, {M_MOD}")
    A("v_add_u32 v20, v116, v7")
    A("v_mov_b32 v17, s7"); A("v_mov_b32 v19, s7")
    A("s_mov_b64 exec, s[68:69]")
    A("ds_write_b128 v117, v[8:11]")
    A("s_mov_b64 exec, 0xff")
    A("ds_read_b64 v[12:13], v20")
    A("s_mov_b64 exec, -1")
    A("s_waitcnt lgkmcnt(0)")
    A("v_mov_b32 v16, v12"); A("v_mov_b32 v18, v13")
    A("s_mov_b64 exec, 0xff")
    A("buffer_store_dwordx4 v[16:19], v6, s[12:15], s59 offen sc1")
    A("s_mov_b64 exec, -1")
    A.stamp(1)
    A("s_waitcnt vmcnt(1)")
    A("s_branch L_h_wq_ok")
    A.label("L_h_nomod2")
    wq_dma()
    A.stamp(1)
    A("s_waitcnt vmcnt(0)")
    A.label("L_h_wq_ok")
    lds_signal_add(C_WQ, 13)
    def poll_mod(cols, vaddr, width, sleep):
        regs = []
        lp = A.poll_begin()
        A(f"s_sleep {sleep}")
        r = 120
        for ci, co in enumerate(cols):
            for p in range(4):
                A(f"s_mov_b32 s59, {M_MOD + p*3072*8 + co}")
                A(f"s_add_u32 s59, s59, s{vaddr[1]}")
                A(f"buffer_load_dwordx{width} v[{r}:{r+width-1}], v{vaddr[0]}, s[12:15], s59 offen sc1")
                regs.append(r); r += width
        A("s_waitcnt vmcnt(0)")
        A("v_mov_b32 v20, 0")
        for rr in regs:
            for t in range(1, width, 2):
                A(f"v_xor_b32 v21, s7, v{rr+t}"); A("v_or_b32 v20, v20, v21")
        A("v_cmp_ne_u32 vcc, 0, v20")
        A.poll_end(lp)
        return regs
    def sum4(dst, regs4, k):
        A(f"v_add_f32 v{dst}, v{regs4[0]+k}, v{regs4[1]+k}")
        A(f"v_add_f32 v{dst}, v{dst}, v{regs4[2]+k}")
        A(f"v_add_f32 v{dst}, v{dst}, v{regs4[3]+k}")
        A.rbf(dst, dst)
    A("s_lshl_b32 s63, s44, 10")
    A("s_cmp_lg_u32 s3, 0"); A("s_cbranch_scc1 L_h_waith")
    A.ln_stats(152, 20, 28, 29, 30, 31)
    if h_first: A(f"s_sleep {h_first}")
    regs = poll_mod([0, 512 * 8], (6, 63), 4, h_sleep)
    A.stamp(2)
    sum4(12, regs[0:4], 0); sum4(13, regs[0:4], 2)
    sum4(14, regs[4:8], 0); sum4(15, regs[4:8], 2)
    A("v_add_f32 v14, 1.0, v14"); A("v_add_f32 v15, 1.0, v15")
    A.rbf(14, 14); A.rbf(15, 15)
    A.modulate2(22, 156, 28, 29, 14, 15, 12, 13, 20)
    A(f"ds_write_b32 v7, v22 offset:{HBUF}")
    A("v_mov_b32 v13, 1")
    A(f"ds_write_b32 v5, v13 offset:{F_H}")
    A.label("L_h_waith")
    A.lds_wait(5, C_WQ, "ge", 4, 13, sleep=1)
    frags(64, T_WQ, 4)
    A.lds_wait(5, F_MODE, "lg", 0, 13, sleep=1)
    A("s_mov_b32 s6, s53")
    A("s_lshl_b32 s61, s6, 20")
    A(f"s_mul_i32 s59, s4, {GRP_STRIDE}"); A("s_add_u32 s61, s61, s59")
    A.lds_wait(5, F_H, "lg", 0, 13, sleep=1)
    mfma_from_lds(112, HBUF, 64, 4)
    A("s_lshl_b32 s59, s45, 2"); A("s_add_u32 s59, s59, s3")
    A("s_mov_b32 s46, s59")
    A("s_lshl_b32 s59, s59, 6"); A("s_lshl_b32 s60, s44, 11"); A("s_add_u32 s47, s59, s60")
    A("s_add_u32 s59, s47, s61"); A(f"s_add_u32 s59, s59, {SH_Q}")
    A("s_mov_b64 exec, s[68:69]")
    A.nop(2)
    A.lstore(f"buffer_store_dwordx4 v[8:11], v112, s[12:15], s59 offen")
    A("s_mov_b64 exec, -1")
    A.stamp(3)
    A("s_cmp_lg_u32 s3, 0"); A("s_cbranch_scc1 L_tailprep")
    A(f"s_add_u32 s59, s61, {SH_Q}"); A("s_add_u32 s60, s59, 4096")
    if q_first: A(f"s_sleep {q_first}")
    lp = A.poll_begin()
    if q_sleep: A(f"s_sleep {q_sleep}")
    for p in range(4):
        for hh in range(2):
            r = 120 + 8 * p + 4 * hh
            A(f"buffer_load_dwordx4 v[{r}:{r+3}], v6, s[12:15], {'s59' if p < 2 else 's60'} offen offset:{(p % 2) * 2048 + 1024 * hh} sc1")
    A("s_waitcnt vmcnt(0)")
    A("v_max3_u32 v21, v120, v121, v122")
    for r in range(123, 151, 2): A(f"v_max3_u32 v21, v21, v{r}, v{r+1}")
    A("v_max_u32 v21, v21, v151")
    A("v_cmp_eq_u32 vcc, -1, v21")
    A.poll_end(lp)
    for k in range(8):
        A(f"v_add_f32 v{120+k}, v{120+k}, v{128+k}")
        A(f"v_add_f32 v{120+k}, v{120+k}, v{136+k}")
        A(f"v_add_f32 v{120+k}, v{120+k}, v{144+k}")
    for k in range(4): A(f"v_cvt_pk_bf16_f32 v{8+k}, v{120+2*k}, v{121+2*k}")
    A("v_lshlrev_b32 v20, 3, v0")
    A(f"ds_write_b64 v20, v[8:9] offset:{QBUF}")
    A(f"ds_write_b64 v20, v[10:11] offset:{QBUF+512}")
    A("v_mov_b32 v12, s6")
    A(f"ds_write_b32 v5, v12 offset:{F_Q}")
    A.stamp(4)
    A.label("L_tailprep")
    A("s_cmp_lg_u32 s3, 1"); A("s_cbranch_scc1 L_tp1")
    regs = poll_mod([3 * 512 * 8, 4 * 512 * 8], (6, 63), 4, 16)
    sum4(108, regs[0:4], 0); sum4(109, regs[0:4], 2)
    sum4(110, regs[4:8], 0); sum4(111, regs[4:8], 2)
    A("v_add_f32 v110, 1.0, v110"); A("v_add_f32 v111, 1.0, v111")
    A.rbf(110, 110); A.rbf(111, 111)
    A(f"ds_write_b128 v6, v[108:111] offset:{SCB}")
    lds_signal_add(F_SC, 13)
    A.label("L_tp1")
    A("s_cmp_lg_u32 s3, 2"); A("s_cbranch_scc1 L_tp2")
    A("v_and_b32 v20, 1, v2"); A("v_lshlrev_b32 v20, 1, v20"); A("v_lshrrev_b32 v21, 1, v2"); A("v_or_b32 v20, v20, v21")
    A("v_add_u32 v20, s4, v20"); A("v_and_b32 v20, 3, v20"); A("v_lshl_add_u32 v20, v20, 2, v4")
    A("s_lshl_b32 s59, s5, 4"); A("v_add_u32 v20, s59, v20")
    A("v_lshlrev_b32 v23, 1, v20")
    A("v_lshlrev_b32 v22, 3, v20")
    A("buffer_load_ushort v106, v23, s[48:51], 0 offen")
    A("s_mov_b32 s62, 0")
    regs = poll_mod([2 * 512 * 8, 5 * 512 * 8], (22, 62), 2, 16)
    sum4(104, regs[0:4], 0); sum4(105, regs[4:8], 0)
    A("v_lshlrev_b32 v106, 16, v106")
    A("v_mov_b32 v107, s7")
    A(f"ds_write_b128 v6, v[104:107] offset:{RBUF}")
    lds_signal_add(F_SC, 13)
    A.label("L_tp2")
    A("s_cmp_lg_u32 s3, 3"); A("s_cbranch_scc1 L_tp3")
    A("s_mov_b64 exec, 0xf")
    lp = A.poll_begin()
    A("s_sleep 32")
    A(f"buffer_load_dwordx4 v[8:11], v6, s[12:15], 0 offen offset:{M_GB} sc1")
    A("s_waitcnt vmcnt(0)")
    A("v_xor_b32 v9, s7, v9"); A("v_xor_b32 v11, s7, v11"); A("v_or_b32 v9, v9, v11")
    A("v_cmp_ne_u32 vcc, 0, v9")
    A.poll_end(lp)
    A("s_mov_b64 exec, -1")
    lds_signal_add(F_SC, 13)
    A.label("L_tp3")
    A.lds_wait(5, F_SC, "ge", 3, 13, sleep=4)
    A(f"ds_read_b128 v[108:111], v6 offset:{SCB}")
    A.lds_wait(5, C_TAIL, "ge", 4, 13, sleep=4)
    frags(64, T_WO, 4)
    A("v_add_u32 v113, s67, v112")
    A("v_add_u32 v114, s67, v7")
    ffn_consts()
    A("s_mov_b32 s52, s57")
    A("s_lshl_b32 s62, s44, 3"); A("s_add_u32 s62, s62, s4"); A("s_lshl_b32 s62, s62, 6")
    A("s_lshl_b32 s63, s46, 14"); A("s_add_u32 s64, s62, s63"); A(f"s_add_u32 s64, s64, {M_X1}")
    A("s_lshl_b32 s63, s46, 11"); A("s_add_u32 s65, s62, s63"); A(f"s_add_u32 s65, s65, {M_X2}")
    A("v_lshlrev_b32 v118, 4, v4")
    A("v_lshrrev_b32 v115, 2, v0"); A("v_lshl_add_u32 v115, v115, 11, v118")
    A("s_lshl_b32 s59, s3, 2"); A("s_lshl_b64 s[26:27], 0xf, s59")
    A("s_add_u32 s47, s47, s61"); A(f"s_add_u32 s47, s47, {SH_GU}")
    A(f"s_add_u32 s62, s61, {SH_GU}"); A("s_add_u32 s63, s62, 4096")
    A("v_lshlrev_b32 v119, 1, v0"); A("s_lshl_b32 s59, s3, 8"); A(f"s_add_u32 s59, s59, {SBUF}"); A("v_add_u32 v119, s59, v119")
    A("s_waitcnt lgkmcnt(0)")
    A.stamp(6)
    A("v_lshrrev_b32 v24, 3, v0"); A("v_and_b32 v25, 7, v0"); A("v_lshlrev_b32 v25, 4, v25")
    A("v_lshl_add_u32 v26, v24, 10, v25")
    A("s_movk_i32 s59, 3584")
    A("v_mad_u32_u24 v27, v24, s59, v25")
    A.srd(48, 32, 1792 * 1024)
    A("s_cmp_lt_u32 s45, 4")
    A("s_cselect_b32 s8, s28, s30"); A("s_cselect_b32 s9, s29, s31"); A(f"s_mov_b32 s10, {hex(512*3584)}"); A("s_mov_b32 s11, 0x20000")
    A("s_lshl_b32 s59, s5, 8"); A(f"s_add_u32 s59, s59, {SH_GU}")
    A("v_add_u32 v28, s59, v6")
    A("s_lshl_b32 s59, s5, 6"); A("s_sub_u32 s59, s59, 256")
    A("v_add_u32 v29, s59, v6")
    A("v_cmp_gt_u32 vcc, 16, v0")
    A("s_lshl_b32 s59, s5, 11"); A("s_lshl_b32 s60, s3, 10"); A("s_add_u32 s59, s59, s60"); A(f"s_add_u32 s59, s59, {SH_T1}")
    A("v_cndmask_b32 v28, v29, v28, vcc")
    A("v_add_u32 v29, s59, v6")
    A.lds_wait(5, F_CLR, "ge", 20, 8, sleep=2)
    A("s_cmp_gt_u32 s3, 2"); A("s_cbranch_scc1 L_w_done")
    A("s_cmp_eq_u32 s3, 2"); A("s_cbranch_scc1 L_w_sh")
    A("buffer_load_dwordx4 v[32:35], v29, s[12:15], s61 offen sc1")
    A("s_branch L_w_done")
    A.label("L_w_sh")
    A("s_mov_b64 exec, 0xfffff")
    A("buffer_load_dwordx4 v[32:35], v28, s[12:15], s61 offen sc1")
    A("s_mov_b64 exec, -1")
    A.label("L_w_done")
    A("v_mov_b32 v120, v26"); A("v_mov_b32 v121, v27"); A("s_mov_b32 s66, s56")
    def tile_gu():
        A("s_and_b32 s60, s45, 3"); A("s_cmp_ge_u32 s60, s52"); A("s_cbranch_scc1 L_t_nogu")
        A("s_lshl_b32 s60, s60, 6"); A("s_add_u32 s60, s60, s66"); A("s_lshl_b32 s60, s60, 1")
        A("s_lshl_b32 s59, s44, 2"); A("s_add_u32 s59, s59, s3"); A(f"s_mul_i32 s59, s59, {32*3584}")
        A("s_add_u32 s59, s59, s60")
        A("s_lshl_b32 s60, s3, 12"); A(f"s_add_u32 s60, s60, {T_GU}")
        for i in range(4):
            A.dma(121, "s[8:11]", "s59", "s60")
            A(f"s_add_u32 s59, s59, {8*3584}"); A("s_add_u32 s60, s60, 1024")
        A.label("L_t_nogu")
    def tile_dn():
        A("s_cmp_ge_u32 s44, s52"); A("s_cbranch_scc1 L_t_nodn")
        A("s_lshl_b32 s59, s44, 6"); A("s_add_u32 s59, s59, s66"); A("s_lshl_b32 s60, s3, 4"); A("s_add_u32 s59, s59, s60")
        A("s_lshl_b32 s59, s59, 10"); A("s_lshl_b32 s60, s45, 7"); A("s_add_u32 s59, s59, s60")
        A("s_lshl_b32 s60, s3, 11"); A(f"s_add_u32 s60, s60, {T_DN}")
        for i in range(2):
            A.dma(120, "s[48:51]", "s59", "s60")
            A("s_add_u32 s59, s59, 8192"); A("s_add_u32 s60, s60, 1024")
        A.label("L_t_nodn")
    def tiles_done():
        A("s_waitcnt vmcnt(0)")
        lds_signal_add(C_TAIL, 8)
    if tmode in "AB": tile_gu()
    if tmode == "A": tile_dn(); tiles_done()
    A.lds_wait(5, F_OCNT, "ge", 8, 8, sleep=2)
    A("s_cmp_lt_u32 s44, s52"); A("s_cbranch_scc1 L_has_down")
    for r in range(8, 12): A(f"v_mov_b32 v{r}, 0")
    A("s_mov_b64 exec, 0xf")
    A("buffer_store_dwordx4 v[8:11], v6, s[12:15], s65 offen sc1")
    A("s_mov_b64 exec, -1")
    A.label("L_has_down")
    def xstore(sbase, voff, mask):
        A(f"v_mov_b32_dpp v9, v8 row_ror:12 {DPPM}")
        A(f"v_mov_b32_dpp v10, v8 row_ror:8 {DPPM}")
        A(f"v_mov_b32_dpp v11, v8 row_ror:4 {DPPM}")
        A(f"s_mov_b64 exec, {mask}")
        A(f"buffer_store_dwordx4 v[8:11], v{voff}, s[12:15], {sbase} offen sc1")
        A("s_mov_b64 exec, -1")
    A.lds_wait(5, F_R, "ge", 1, 8, sleep=spin)
    lp = A.poll_begin()
    for t in range(4):
        A(f"buffer_load_dwordx4 v[{24+4*t}:{27+4*t}], v113, s[12:15], s61 offen offset:{SH_AO + 64*t} sc1")
    A("s_waitcnt vmcnt(0)")
    for t in range(4):
        A(f"v_mfma_f32_16x16x32_bf16 v[8:11], v[{24+4*t}:{27+4*t}], v[{64+4*t}:{67+4*t}], {'0' if t == 0 else 'v[8:11]'}")
    A("v_pk_max_u16 v16, v24, v25")
    for r in range(26, 40): A(f"v_pk_max_u16 v16, v16, v{r}")
    A("v_lshrrev_b32 v17, 16, v16")
    A("v_max_u16 v16, v16, v17")
    A("v_cmp_eq_u16 vcc, -1, v16")
    A.poll_end(lp)
    xstore("s64", 115, "0xffffffff")
    lds_signal_add(C_WQ, 13)
    A.stamp(9)
    if tmode != "A":
        A.lds_wait(5, C_WQ, "ge", 8, 8, sleep=0)
        if tmode == "C": tile_gu()
        tile_dn(); tiles_done()
    A.lds_wait(5, C_TAIL, "ge", 8, 8, sleep=0)
    frags(80, T_GU, 4); frags(96, T_DN, 2)
    A.lds_wait(5, F_R, "ge", 2, 8, sleep=spin)
    A("s_and_b32 s59, s45, 3"); A("s_cmp_ge_u32 s59, s52"); A("s_cbranch_scc1 L_gu")
    lp = A.poll_begin()
    A(f"buffer_load_dwordx4 v[8:11], v6, s[12:15], s61 offen offset:{SH_AX2} sc1")
    A(f"buffer_load_dword v12, v114, s[12:15], s61 offen offset:{SH_AX2} sc1")
    A("s_waitcnt vmcnt(0)")
    A("v_pk_max_u16 v16, v8, v9"); A("v_pk_max_u16 v17, v10, v11"); A("v_pk_max_u16 v16, v16, v12"); A("v_pk_max_u16 v16, v16, v17")
    A("v_lshrrev_b32 v17, 16, v16")
    A("v_max_u16 v16, v16, v17")
    A("v_cmp_eq_u16 vcc, -1, v16")
    A.poll_end(lp)
    A.stamp(11)
    A.ln_stats(8, 24, 32, 33, 34, 35)
    A.modulate2(22, 12, 32, 33, 110, 111, 108, 109, 20)
    A("ds_write_b32 v116, v22")
    mfma_from_lds(117, 0, 80, 4)
    A("s_mov_b64 exec, s[68:69]")
    A.nop(6)
    A.lstore("buffer_store_dwordx4 v[8:11], v112, s[12:15], s47 offen")
    A("s_mov_b64 exec, -1")
    A.stamp(12)
    A.label("L_gu")
    A("s_cmp_ge_u32 s44, s52"); A("s_cbranch_scc1 L_hend")
    lp = A.poll_begin()
    for p in range(4):
        sb_ = "s62" if p < 2 else "s63"
        A(f"buffer_load_dword v{8+p}, v114, s[12:15], {sb_} offen offset:{(p % 2) * 2048} sc1")
        A(f"buffer_load_dword v{12+p}, v114, s[12:15], {sb_} offen offset:{(p % 2) * 2048 + 1024} sc1")
    A("s_waitcnt vmcnt(0)")
    A("v_max3_u32 v16, v8, v9, v10"); A("v_max3_u32 v16, v16, v11, v12"); A("v_max3_u32 v16, v16, v13, v14"); A("v_max_u32 v16, v16, v15")
    A("v_cmp_eq_u32 vcc, -1, v16")
    A("v_add_f32 v8, v8, v9"); A("v_add_f32 v12, v12, v13")
    A("v_add_f32 v8, v8, v10"); A("v_add_f32 v12, v12, v14")
    A("v_add_f32 v8, v8, v11"); A("v_add_f32 v12, v12, v15")
    A.poll_end(lp)
    A("v_cvt_pk_bf16_f32 v12, v8, v12")
    A("v_lshlrev_b32 v8, 16, v12"); A("v_and_b32 v12, 0xffff0000, v12")
    A("v_mul_f32 v9, v8, v8")
    A("v_mul_f32 v9, 0x3d372713, v9")
    A("v_fma_f32 v9, v9, v8, v8")
    A("v_mul_f32 v9, 0xc0135761, v9")
    A("v_exp_f32 v9, v9")
    A.nop(1)
    A("v_add_f32 v9, 1.0, v9")
    A("v_rcp_f32 v9, v9")
    A.nop(1)
    A("v_mul_f32 v8, v8, v9")
    A.rbf(8, 8)
    A("v_mul_f32 v8, v8, v12")
    A("v_cvt_pk_bf16_f32 v8, v8, v8")
    A("ds_write_b16 v119, v8")
    for t in range(2): A(f"ds_read_b128 v[{24+4*t}:{27+4*t}], v117 offset:{64*t}")
    A("s_waitcnt lgkmcnt(0)")
    for t in range(2):
        A(f"v_mfma_f32_16x16x32_bf16 v[8:11], v[{24+4*t}:{27+4*t}], v[{96+4*t}:{99+4*t}], {'0' if t == 0 else 'v[8:11]'}")
    A.nop(8)
    xstore("s65", 118, "s[26:27]")
    A.stamp(13)
    A.label("L_hend")
    lds_signal_add(C_WQ, 13)
    A.dump_stamps(14)
    A.label("L_exit")
    A("s_endpgm")
    A.mark("T")
    A.L += A.tail
    segs = {}; cur = "P"; segs[cur] = []
    for x in A.L:
        if x.startswith("@@"): cur = x[2:]; segs[cur] = []
        else: segs[cur].append(x)
    order = ["P", "H1", "V1", "H2", "K", "V2", "T"] if layout == 1 else (["P", "H1", "V1", "K", "H2", "V2", "T"] if layout == 2 else ["P", "K", "V1", "V2", "H1", "H2", "T"])
    A.L = [x for k in order for x in segs[k]]
    A.L.append(".fill 4096, 4, 0xBF800000")
    body = "\n".join(A.L)
    src = HEADER + f"""; @launch grid=(256,1,1) block=(768,1,1) lds={LDS_BYTES}
.amdgcn_target "amdgcn-amd-amdhsa--gfx950"
.text
.globl {NAME}_kernel
.p2align 8
.type {NAME}_kernel,@function
{NAME}_kernel:
{body}
.section .rodata,"a"
.p2align 6
.amdhsa_kernel {NAME}_kernel
  .amdhsa_next_free_vgpr 168
  .amdhsa_next_free_sgpr 102
  .amdhsa_accum_offset 168
  .amdhsa_group_segment_fixed_size 0
  .amdhsa_kernarg_size 112
  .amdhsa_user_sgpr_count 2
  .amdhsa_user_sgpr_kernarg_segment_ptr 1
  .amdhsa_system_sgpr_workgroup_id_x 1
  .amdhsa_float_denorm_mode_32 3
  .amdhsa_float_denorm_mode_16_64 3
.end_amdhsa_kernel
"""
    open(path, "w").write(src)

if __name__ == "__main__":
    gen(sys.argv[1] if len(sys.argv) > 1 else "k.s", stamps=("stamps" in sys.argv))
```

```python
import sys
from gen_common import NAME, HEADER

M_E   = 0x00000
M_BL  = 0x01000
M_BG  = 0x02000
M_BG2 = 0x03000
M_MOD = 0x04000
M_GB  = 0x00800
M_X2  = 0x20000
M_X1  = 0x40000
LSET  = 0x100000
GSET  = 0x200000
GRP_STRIDE = 0x16000
SH_AO, SH_AX2, SH_ST, SH_Q, SH_GU, SH_T1 = 0, 1024, 4096, 8192, 16384, 24576
M_DBG = 0x800000
WS_RECORDS = 0x1000000
F_Q, F_R, F_MODE, F_CLR, F_P, F_OCNT, F_H, C_MOD, C_WQ, C_TAIL, C_ST, F_ST, F_SC = 0, 4, 8, 12, 16, 32, 36, 40, 44, 48, 52, 56, 60
STW, STG = 64, 192
QBUF, HBUF, SBUF, PBUF, ORED, SCB, RBUF = 256, 1280, 1536, 2560, 11776, 19968, 20992
PSTR = 144
T_DN, T_MOD, T_WQ, T_WO, T_GU = 22528, 30720, 47104, 63488, 79872
LDS_BYTES = 96256
LOCAL_TRIES = 256
TIMEOUT = 1 << 18

DPPM = "row_mask:0xf bank_mask:0xf"

class G:
    def __init__(self, stamps=False, WK=6, WV=6, wflags="nt"):
        self.L = []; self.n = 0; self.tail = []
        self.stamps = stamps; self.WK = WK; self.WV = WV; self.wflags = wflags
    def __call__(self, s): self.L.append("    " + s)
    def label(self, s): self.L.append(s + ":")
    def mark(self, name): self.L.append("@@" + name)
    def uniq(self, p): self.n += 1; return f"L_{p}_{self.n}"
    def nop(self, n): self(f"s_nop {n-1}")
    def stamp(self, k):
        if self.stamps == "ends" and k not in (0, 14): return
        if self.stamps: self(f"s_memrealtime s[{70+2*k}:{71+2*k}]")
    def dump_stamps(self, nst):
        if not self.stamps: return
        A = self
        if self.stamps == "ends" and nst != 15: return
        if self.stamps == "amp": return
        if self.stamps == "dbg":
            if nst != 15: return
            skip = A.uniq("nodbg")
            A("s_waitcnt vmcnt(0) lgkmcnt(0)")
            A("s_cmp_lg_u32 s2, 0"); A(f"s_cbranch_scc1 {skip}")
            A("s_mov_b64 exec, -1")
            for k in range(nst):
                A(f"s_sub_u32 s52, s{70+2*k}, s70")
                A(f"v_writelane_b32 v1, s52, {k}")
            A("v_lshlrev_b32 v2, 2, v0")
            A(f"s_mov_b64 exec, {hex((1 << nst) - 1)}")
            A("global_store_dword v2, v1, s[40:41]")
            A("s_waitcnt vmcnt(0)")
            A.label(skip)
            return
        A("s_waitcnt vmcnt(0) lgkmcnt(0)")
        A("s_mov_b64 exec, -1")
        for k in range(nst):
            A(f"v_writelane_b32 v1, s{70+2*k}, {k}")
        A("s_mul_i32 s52, s2, 12"); A("s_add_u32 s52, s52, s3"); A("s_lshl_b32 s52, s52, 6"); A(f"s_add_u32 s52, s52, {M_DBG}")
        A("v_lshlrev_b32 v2, 2, v0")
        A(f"s_mov_b64 exec, {hex((1 << nst) - 1)}")
        A("buffer_store_dword v1, v2, s[12:15], s52 offen")
        A("s_waitcnt vmcnt(0)")
    def srd(self, d, ptr, nbytes):
        A = self
        A(f"s_mov_b32 s{d}, s{ptr}"); A(f"s_mov_b32 s{d+1}, s{ptr+1}")
        A(f"s_mov_b32 s{d+2}, {hex(nbytes)}"); A(f"s_mov_b32 s{d+3}, 0x20000")
    def lstore(self, instr):
        A = self
        slow = A.uniq("slow"); back = A.uniq("back")
        A("s_cmp_eq_u32 s6, 1")
        A(f"s_cbranch_scc0 {slow}")
        A(instr)
        A.label(back)
        self.tail += [f"{slow}:", f"    {instr} sc1", f"    s_branch {back}"]
    def lds_wait(self, vaddr, off, cmp, val, vtmp, sleep=1):
        A = self
        lp = A.uniq("lw"); done = A.uniq("lwd")
        A("s_mov_b32 s54, 0")
        A.label(lp)
        A(f"ds_read_b32 v{vtmp}, v{vaddr} offset:{off}")
        A("s_add_u32 s54, s54, 1")
        A("s_waitcnt lgkmcnt(0)")
        A(f"v_readfirstlane_b32 s53, v{vtmp}")
        A(f"s_cmp_gt_u32 s54, {TIMEOUT*4}")
        A(f"s_cbranch_scc1 {done}")
        A(f"s_cmp_{cmp}_u32 s53, {val}")
        A(f"s_cbranch_scc1 {done}")
        if sleep: A(f"s_sleep {sleep}")
        A(f"s_branch {lp}")
        A.label(done)
    def ror_reduce(self, op, regs, steps=(8, 4, 2, 1)):
        A = self
        for k in steps:
            if len(regs) < 3: A.nop(3 - len(regs))
            for r in regs:
                A(f"v_{op}_f32_dpp v{r}, v{r}, v{r} row_ror:{k} {DPPM}")
    def rbf(self, d, s, t=None):
        self(f"v_cvt_pk_bf16_f32 v{d}, v{s}, v{s}")
        self(f"v_and_b32 v{d}, 0xffff0000, v{d}")
    def get_nonce(self, vz, vt):
        A = self
        lp = A.uniq("nonce"); done = A.uniq("nonced")
        A("s_mov_b32 s54, 0")
        A.label(lp)
        A(f"global_load_dword v{vt}, v{vz}, s[40:41] sc1")
        A("s_add_u32 s54, s54, 1")
        A("s_waitcnt vmcnt(0)")
        A(f"v_readfirstlane_b32 s7, v{vt}")
        A(f"s_cmp_gt_u32 s54, {TIMEOUT}")
        A(f"s_cbranch_scc1 {done}")
        A("s_cmp_eq_u32 s7, 0")
        A(f"s_cbranch_scc1 {lp}")
        A.label(done)
    def poll_begin(self):
        lp = self.uniq("poll")
        self("s_mov_b32 s54, 0")
        self.label(lp)
        return lp
    def poll_end(self, lp):
        A = self
        done = A.uniq("pd")
        A("s_add_u32 s54, s54, 1")
        A(f"s_cmp_gt_u32 s54, {TIMEOUT}")
        A(f"s_cbranch_scc1 {done}")
        A(f"s_cbranch_vccnz {lp}")
        A.label(done)
    def red32(self, voff, sbase, a, b, t, stamp=None, w=None):
        A = self
        lp = A.poll_begin()
        A(f"buffer_load_dwordx4 v[{a}:{a+3}], v{voff}, s[12:15], {sbase} offen sc1")
        A(f"buffer_load_dwordx4 v[{b}:{b+3}], v{voff}, s[12:15], {sbase} offen offset:1024 sc1")
        A("s_waitcnt vmcnt(0)")
        A(f"v_max3_u32 v{t}, v{a}, v{a+1}, v{a+2}")
        A(f"v_max3_u32 v{t}, v{t}, v{a+3}, v{b}")
        A(f"v_max3_u32 v{t}, v{t}, v{b+1}, v{b+2}")
        A(f"v_max_u32 v{t}, v{t}, v{b+3}")
        A(f"v_cmp_eq_u32 vcc, -1, v{t}")
        if w is None:
            for i in range(4): A(f"v_add_f32 v{a+i}, v{a+i}, v{b+i}")
        else:
            for i in range(4): A(f"v_mul_f32 v{a+i}, v{a+i}, v{w[0]}")
            for i in range(4): A(f"v_fmac_f32 v{a+i}, v{b+i}, v{w[1]}")
        A.poll_end(lp)
        if stamp is not None and self.stamps is True:
            A.stamp(stamp); A(f"s_mov_b32 s{70+2*(stamp+1)}, s54")
        A(f"v_permlane32_swap_b32 v{a}, v{a+1}")
        A(f"v_permlane32_swap_b32 v{a+2}, v{a+3}")
        A(f"v_add_f32 v{a}, v{a}, v{a+1}")
        A(f"v_add_f32 v{a+2}, v{a+2}, v{a+3}")
        A.nop(2)
        A(f"v_permlane16_swap_b32 v{a}, v{a+2}")
        A(f"v_add_f32 v{a}, v{a}, v{a+2}")
        A.ror_reduce("add", [a], steps=(8, 4))
    def red32p(self, voff, sbase, a, t, base, D, pace):
        A = self
        def issue(k):
            r = base + 8 * k
            A(f"buffer_load_dwordx4 v[{r}:{r+3}], v{voff}, s[12:15], {sbase} offen sc1")
            A(f"buffer_load_dwordx4 v[{r+4}:{r+7}], v{voff}, s[12:15], {sbase} offen offset:1024 sc1")
        lp = A.uniq("pp"); done = A.uniq("ppd")
        A("s_mov_b32 s54, 0")
        for k in range(D - 1):
            issue(k)
            if pace: A(f"s_sleep {pace}")
        A.label(lp)
        for k in range(D):
            r = base + 8 * k
            issue((k + D - 1) % D)
            A(f"s_waitcnt vmcnt({2 * (D - 1)})")
            A(f"v_max3_u32 v{t}, v{r}, v{r+1}, v{r+2}")
            A(f"v_max3_u32 v{t}, v{t}, v{r+3}, v{r+4}")
            A(f"v_max3_u32 v{t}, v{t}, v{r+5}, v{r+6}")
            A(f"v_max_u32 v{t}, v{t}, v{r+7}")
            A(f"v_cmp_eq_u32 vcc, -1, v{t}")
            for i in range(4): A(f"v_add_f32 v{a+i}, v{r+i}, v{r+4+i}")
            A(f"s_cbranch_vccz {done}")
            if pace: A(f"s_sleep {pace}")
        A("s_add_u32 s54, s54, 1")
        A(f"s_cmp_le_u32 s54, {TIMEOUT}")
        A(f"s_cbranch_scc1 {lp}")
        A.label(done)
        A.nop(1)
        A(f"v_permlane32_swap_b32 v{a}, v{a+1}")
        A(f"v_permlane32_swap_b32 v{a+2}, v{a+3}")
        A(f"v_add_f32 v{a}, v{a}, v{a+1}")
        A(f"v_add_f32 v{a+2}, v{a+2}, v{a+3}")
        A.nop(2)
        A(f"v_permlane16_swap_b32 v{a}, v{a+2}")
        A(f"v_add_f32 v{a}, v{a}, v{a+2}")
        A.ror_reduce("add", [a], steps=(8, 4))
    def ln_stats(self, x, e, vmean, vrden, t0, t1):
        A = self
        assert e % 2 == 0 and vmean % 2 == 0 and vrden == vmean + 1 and t0 % 2 == 0 and t1 == t0 + 1
        for i in range(4):
            A(f"v_lshlrev_b32 v{e+2*i}, 16, v{x+i}")
            A(f"v_and_b32 v{e+2*i+1}, 0xffff0000, v{x+i}")
        A(f"v_readfirstlane_b32 s55, v{e}")
        A.nop(2)
        A(f"v_sub_f32 v{vmean}, 0, s55"); A(f"v_sub_f32 v{vrden}, 0, s55")
        for i in range(4): A(f"v_pk_add_f32 v[{e+2*i}:{e+2*i+1}], v[{e+2*i}:{e+2*i+1}], v[{vmean}:{vrden}]")
        A(f"v_pk_mul_f32 v[{t0}:{t1}], v[{e}:{e+1}], v[{e}:{e+1}]")
        A(f"v_pk_add_f32 v[{vmean}:{vrden}], v[{e}:{e+1}], v[{e+2}:{e+3}]")
        for i in range(1, 4):
            A(f"v_pk_fma_f32 v[{t0}:{t1}], v[{e+2*i}:{e+2*i+1}], v[{e+2*i}:{e+2*i+1}], v[{t0}:{t1}]")
            if i > 1: A(f"v_pk_add_f32 v[{vmean}:{vrden}], v[{vmean}:{vrden}], v[{e+2*i}:{e+2*i+1}]")
        A(f"v_add_f32 v{t1}, v{t0}, v{t1}")
        A(f"v_add_f32 v{t0}, v{vmean}, v{vrden}")
        A.nop(2)
        A(f"v_permlane32_swap_b32 v{t0}, v{t1}")
        A(f"v_add_f32 v{t0}, v{t0}, v{t1}")
        A(f"v_mov_b32 v{t1}, v{t0}")
        A.nop(2)
        A(f"v_permlane16_swap_b32 v{t0}, v{t1}")
        A(f"v_add_f32 v{t0}, v{t0}, v{t1}")
        A.ror_reduce("add", [t0])
        A(f"v_mul_f32 v{t0}, 0x3b000000, v{t0}")
        A.nop(1)
        A(f"v_readlane_b32 s56, v{t0}, 0")
        A(f"v_readlane_b32 s57, v{t0}, 32")
        A.nop(1)
        A(f"v_mov_b32 v{t1}, s56")
        A(f"v_fma_f32 v{t0}, -v{t1}, v{t1}, s57")
        A(f"v_add_f32 v{t1}, s55, v{t1}")
        A(f"v_cvt_pk_bf16_f32 v{vmean}, v{t0}, v{t1}")
        A(f"v_lshlrev_b32 v{t0}, 16, v{vmean}")
        A(f"v_and_b32 v{vmean}, 0xffff0000, v{vmean}")
        A(f"v_max_f32 v{t0}, 0, v{t0}")
        A(f"v_add_f32 v{t0}, 0x3727c5ac, v{t0}")
        A.rbf(t0, t0)
        A(f"v_sqrt_f32 v{t0}, v{t0}")
        A.nop(1)
        A.rbf(t0, t0)
        A(f"v_rcp_f32 v{vrden}, v{t0}")
        A.nop(1)
    def modulate2(self, d, xp, vmean, vrden, c1a, c1b, sha, shb, t):
        A = self
        A(f"v_lshlrev_b32 v{t}, 16, v{xp}"); A(f"v_and_b32 v{t+1}, 0xffff0000, v{xp}")
        A(f"v_sub_f32 v{t}, v{t}, v{vmean}"); A(f"v_sub_f32 v{t+1}, v{t+1}, v{vmean}")
        for opa, opb in ((f"v_mul_f32 v{t}, v{vrden}, v{t}", f"v_mul_f32 v{t+1}, v{vrden}, v{t+1}"),
                         (f"v_mul_f32 v{t}, v{c1a}, v{t}", f"v_mul_f32 v{t+1}, v{c1b}, v{t+1}"),
                         (f"v_add_f32 v{t}, v{sha}, v{t}", f"v_add_f32 v{t+1}, v{shb}, v{t+1}")):
            A(f"v_cvt_pk_bf16_f32 v{d}, v{t}, v{t+1}")
            A(f"v_lshlrev_b32 v{t}, 16, v{d}"); A(f"v_and_b32 v{t+1}, 0xffff0000, v{d}")
            A(opa); A(opb)
        A(f"v_cvt_pk_bf16_f32 v{d}, v{t}, v{t+1}")
    def modulate(self, d, xv, vmean, vrden, c1, sh):
        A = self
        A(f"v_sub_f32 v{d}, v{xv}, v{vmean}")
        A.rbf(d, d)
        A(f"v_mul_f32 v{d}, v{d}, v{vrden}")
        A.rbf(d, d)
        A(f"v_mul_f32 v{d}, {c1}, v{d}")
        A.rbf(d, d)
        A(f"v_add_f32 v{d}, {sh}, v{d}")
    def silu8(self, c, s, t):
        A = self
        for i in range(4):
            A(f"v_lshlrev_b32 v{s+2*i}, 16, v{c+i}")
            A(f"v_and_b32 v{s+2*i+1}, 0xffff0000, v{c+i}")
        for i in range(8):
            A(f"v_mul_f32 v{t+i}, 0xbfb8aa3b, v{s+i}")
        for i in range(8): A(f"v_exp_f32 v{t+i}, v{t+i}")
        for i in range(8): A(f"v_add_f32 v{t+i}, 1.0, v{t+i}")
        for i in range(8): A(f"v_rcp_f32 v{t+i}, v{t+i}")
        for i in range(8): A(f"v_mul_f32 v{s+i}, v{s+i}, v{t+i}")
        for i in range(8): A.rbf(s + i, s + i)
    def dma(self, voff, srd, soff, ldsaddr_sgpr_or_imm):
        A = self
        A(f"s_mov_b32 m0, {ldsaddr_sgpr_or_imm}")
        A.nop(1)
        A(f"buffer_load_dwordx4 v{voff}, {srd}, {soff} offen {self.wflags} lds")


def gen(path, stamps=False, WK=5, WV=5, WV2=8, kpre=5, kgo=2, wflags="nt", h_sleep=4, exp="", exact=True, x2_sleep=0, late_tiles=True, t1x4=True, tlb=0, spin=0, warm=False, warm1=True, thr=24, WV3=0, tmode='A', st_sleep=16, h_first=30, q_first=0, q_sleep=0, s0=0, rate=2, diag='', xd=3, xpace=1, td=2, tpace=1, mj=1, wb='', layout=2, ksl=3, ents=(12, 16, 20, 24, 28), ilv=1, rot=None, grp=0):
    A = G(stamps, WK, WV, wflags)
    def lds_signal_add(cnt, vone):
        A(f"v_mov_b32 v{vone}, 1")
        A("s_mov_b64 exec, 1")
        A(f"ds_add_u32 v5, v{vone} offset:{cnt}")
        A("s_mov_b64 exec, -1")
    A.stamp(0)
    A("s_cmp_ge_u32 s2, 256")
    A("s_cbranch_scc1 L_exit")
    A("s_load_dwordx16 s[16:31], s[0:1], 0")
    A("s_load_dwordx8 s[32:39], s[0:1], 64")
    A("s_load_dwordx4 s[40:43], s[0:1], 96")
    A("v_lshrrev_b32 v1, 6, v0")
    A("v_and_b32 v0, 63, v0")
    A("s_and_b32 s4, s2, 7")
    A("v_readfirstlane_b32 s3, v1")
    A("s_lshr_b32 s5, s2, 3")
    A("v_lshrrev_b32 v2, 4, v0")
    A("v_bfe_u32 v3, v0, 2, 2")
    A("v_and_b32 v4, 3, v0")
    A("v_mov_b32 v5, 0")
    A("s_mov_b32 s6, 1")
    A("s_lshr_b32 s44, s5, 3")
    A("s_and_b32 s45, s5, 7")
    if grp:
        A("s_lshl_b32 s58, s4, 22"); A(f"s_lshr_b32 s59, s5, {grp}"); A(f"s_lshl_b32 s59, s59, {17 + grp}"); A("s_add_u32 s58, s58, s59")
        A(f"s_and_b32 s59, s5, {(1 << grp) - 1}"); A("s_lshl_b32 s59, s59, 12"); A("s_add_u32 s58, s58, s59")
    else:
        A("s_lshl_b32 s58, s4, 22"); A("s_lshl_b32 s59, s5, 17"); A("s_add_u32 s58, s58, s59")
    STEP = 4096 << grp
    if rot:
        A(f"s_mul_i32 s57, s5, {rot[0]}"); A(f"s_mul_i32 s59, s4, {rot[1]}"); A("s_add_u32 s57, s57, s59")
        A("s_and_b32 s57, s57, 31"); A(f"s_lshl_b32 s57, s57, {12 + grp}")
    if layout:
        A("s_cmp_ge_u32 s3, 8"); A("s_cbranch_scc1 L_vwave")
        A("s_cmp_ge_u32 s3, 4"); A("s_cbranch_scc1 L_kwave")
    else:
        A("s_cmp_lt_u32 s3, 4"); A("s_cbranch_scc1 L_helper")
        A("s_cmp_ge_u32 s3, 8"); A("s_cbranch_scc1 L_vwave")
    A.mark("K")
    A.label("L_kwave")
    def modjob():
        if mj == 1:
            rank_e = [0, 1, 2, 15, 3, 4, 5, 6]; rank_o = [0, 15, 1, 15, 2, 15, 3, 4]
            ve = sum(v << (4 * i) for i, v in enumerate(rank_e)); vo = sum(v << (4 * i) for i, v in enumerate(rank_o))
            A("s_bitcmp1_b32 s4, 0")
            A(f"s_mov_b32 s46, {hex(ve)}"); A(f"s_mov_b32 s47, {hex(vo)}")
            A("s_cselect_b32 s46, s47, s46"); A("s_cselect_b32 s47, 5, 7"); A("s_cselect_b32 s61, 28, 0")
            A("s_lshl_b32 s59, s45, 2"); A("s_lshr_b32 s46, s46, s59"); A("s_and_b32 s46, s46, 15")
            A("s_mul_i32 s47, s47, s44")
            A("s_lshr_b32 s59, s4, 1"); A("s_mul_i32 s59, s59, 48"); A("s_add_u32 s59, s59, s61"); A("s_add_u32 s59, s59, s47")
            A("s_cmp_eq_u32 s46, 15"); A("s_cselect_b32 s59, 240, s59"); A("s_add_u32 s46, s46, s59")
            return
        tab = [0, 4, 1, 15, 2, 5, 3, 15, 6, 7, 10, 15, 8, 9, 11, 15]
        val = sum(v << (4 * i) for i, v in enumerate(tab))
        A(f"s_mov_b32 s46, {hex(val & 0xffffffff)}"); A(f"s_mov_b32 s47, {hex(val >> 32)}")
        A("s_lshl_b32 s59, s4, 1"); A("s_lshr_b32 s61, s5, 4"); A("s_add_u32 s59, s59, s61"); A("s_lshl_b32 s59, s59, 2")
        A("s_lshr_b64 s[46:47], s[46:47], s59")
        A("s_and_b32 s46, s46, 15"); A("s_lshl_b32 s46, s46, 4"); A("s_and_b32 s59, s5, 15"); A("s_add_u32 s46, s46, s59")
    def ffn_consts():
        A("s_lshr_b32 s56, s4, 1"); A("s_mul_i32 s56, s56, 448"); A("s_and_b32 s57, s4, 1")
        A("s_lshl_b32 s59, s57, 8"); A("s_add_u32 s56, s56, s59"); A("s_sub_u32 s57, 4, s57")
    def mktag():
        A("s_mul_i32 s7, s7, 0x9e3779b1"); A("s_add_u32 s7, s7, 0x7f4a7c15")
    KD = 40
    if stamps is True: A("s_memtime s[82:83]")
    A("s_sub_u32 s60, s3, 4")
    A(f"s_lshl_b32 s59, s60, {15 if not ilv else (10 if ilv == 1 else 12)}"); A("s_add_u32 s58, s58, s59")
    A("v_lshlrev_b32 v6, 8, v3")
    A("v_lshl_add_u32 v6, v2, 6, v6")
    A("v_lshl_add_u32 v6, v4, 4, v6")
    A("v_add_u32 v1, s58, v6")
    A("s_waitcnt lgkmcnt(0)")
    A.srd(8, 18, 0x2000000)
    W = A.WK
    if kpre == 0:
        A("s_barrier"); A.srd(12, 42, WS_RECORDS)
    for i in range(32):
        r = KD + 4 * i
        if ilv == 1:
            if rot:
                A(f"buffer_load_dwordx4 v[{r}:{r+3}], v1, s[8:11], s57 offen nt")
                A(f"s_add_u32 s57, s57, {STEP}"); A(f"s_and_b32 s57, s57, {hex(32 * STEP - 1)}")
            else:
                A(f"buffer_load_dwordx4 v[{r}:{r+3}], v6, s[8:11], s58 offen nt")
                A(f"s_add_u32 s58, s58, {STEP}")
        else:
            A(f"buffer_load_dwordx4 v[{r}:{r+3}], v6, s[8:11], s58 offen offset:{(i % 4) * 1024} nt")
            if i % 4 == 3: A(f"s_add_u32 s58, s58, {4096 if not ilv else 16384}")
        if ksl and i == 1: A(f"s_sleep {ksl}")
        if i == kpre - 1:
            A("s_barrier")
            A.srd(12, 42, WS_RECORDS)
        if i >= W - 1 and i != 31: A(f"s_waitcnt vmcnt({W-1})")
        if diag == "kprog":
            if i == kpre - 1: A.stamp(8)
            if i in (W - 1, 8, 12, 16, 24): A.stamp({W - 1: 9, 8: 10, 12: 11, 16: 12, 24: 13}[i])
    A(f"s_waitcnt vmcnt({kgo})")
    A("s_lshl_b32 s59, s60, 2")
    A("v_mov_b32 v30, s59")
    A("v_mov_b32 v7, 1")
    A(f"ds_write_b32 v30, v7 offset:{F_P}")
    A.stamp(1)
    A("v_lshlrev_b32 v7, 8, v4"); A("v_lshl_add_u32 v7, v2, 6, v7"); A("v_lshl_add_u32 v7, v3, 4, v7")
    if "S" in exp:
        A("s_waitcnt vmcnt(0)"); A.stamp(2); A.dump_stamps(6); A("s_endpgm")
    A.lds_wait(5, F_Q, "lg", 0, 8)
    A("s_mov_b32 s6, s53")
    A(f"ds_read_b128 v[8:11], v7 offset:{QBUF}")
    A.stamp(2)
    A("s_waitcnt vmcnt(0) lgkmcnt(0)")
    C = 12
    TS = 20
    def extract(i):
        d = KD + 4 * i; c = C + i // 4; jj = i % 4
        first = True
        for b in range(4):
            n = 4 * ((jj - b) & 3)
            ctl = f"row_ror:{n}" if n else "quad_perm:[0,1,2,3]"
            if first: A(f"v_mov_b32_dpp v{c}, v{d+b} {ctl} row_mask:0xf bank_mask:{hex(1 << jj)}")
            else: A(f"v_add_f32_dpp v{c}, v{d+b}, v{c} {ctl} row_mask:0xf bank_mask:{hex(1 << jj)}")
            first = False
    for i in range(32):
        d = KD + 4 * i
        A(f"v_mfma_f32_16x16x32_bf16 v[{d}:{d+3}], v[{d}:{d+3}], v[8:11], 0")
        if i >= 3: extract(i - 3)
        elif i == 2: A.nop(6)
    A.nop(4); extract(29); extract(30); extract(31)
    for p in range(4):
        a, b = C + 2 * p, C + 2 * p + 1
        A(f"v_cvt_pk_bf16_f32 v{TS}, v{a}, v{b}")
        A(f"v_lshlrev_b32 v{a}, 16, v{TS}")
        A(f"v_and_b32 v{b}, 0xffff0000, v{TS}")
        A(f"v_mul_f32 v{a}, 0x3db504f3, v{a}")
        A(f"v_mul_f32 v{b}, 0x3db504f3, v{b}")
        A(f"v_cvt_pk_bf16_f32 v{TS}, v{a}, v{b}")
        A(f"v_lshlrev_b32 v{a}, 16, v{TS}")
        A(f"v_and_b32 v{b}, 0xffff0000, v{TS}")
    def head_allreduce(op, r, t):
        A.nop(2); A(f"v_{op}_f32_dpp v{r}, v{r}, v{r} row_ror:4 {DPPM}")
        A.nop(2); A(f"v_{op}_f32_dpp v{r}, v{r}, v{r} row_ror:8 {DPPM}")
        for sw in ("16", "32"):
            A(f"v_mov_b32 v{t}, v{r}"); A.nop(2)
            A(f"v_permlane{sw}_swap_b32 v{r}, v{t}")
            A(f"v_{op}_f32 v{r}, v{r}, v{t}")
    MW, LW = 22, 23
    A(f"v_max3_f32 v{MW}, v{C}, v{C+1}, v{C+2}")
    A(f"v_max3_f32 v{MW}, v{MW}, v{C+3}, v{C+4}")
    A(f"v_max3_f32 v{MW}, v{MW}, v{C+5}, v{C+6}")
    A(f"v_max_f32 v{MW}, v{MW}, v{C+7}")
    head_allreduce("max", MW, TS)
    for c in range(8): A(f"v_sub_f32 v{C+c}, v{C+c}, v{MW}")
    for c in range(8): A(f"v_mul_f32 v{C+c}, 0x3fb8aa3b, v{C+c}")
    for c in range(8): A(f"v_exp_f32 v{C+c}, v{C+c}")
    def write_p(scale):
        A("v_lshl_add_u32 v25, v2, 2, v4")
        A(f"v_mul_u32_u24 v25, {PSTR}, v25")
        A("v_lshl_add_u32 v25, v3, 2, v25")
        A(f"s_mul_i32 s59, s60, {16*PSTR}")
        A("v_add_u32 v25, s59, v25")
        for c in range(8):
            if scale: A(f"v_mul_f32 v{C+c}, v{C+c}, v{MW}")
            A(f"v_cvt_pk_bf16_f32 v{32+c}, v{C+c}, v{C+c}")
            A(f"ds_write_b32 v25, v{32+c} offset:{PBUF + 16*c}")
        A("v_mov_b32 v7, 2")
        A(f"ds_write_b32 v30, v7 offset:{F_P}")
    if not exact: write_p(False); A.stamp(5)
    A.nop(1)
    A(f"v_add_f32 v{LW}, v{C}, v{C+1}")
    for c in range(2, 8): A(f"v_add_f32 v{LW}, v{LW}, v{C+c}")
    head_allreduce("add", LW, TS)
    A("s_lshl_b32 s59, s60, 5")
    A("v_lshl_add_u32 v24, v4, 3, s59")
    A("v_mov_b32 v25, 1")
    A("s_mov_b64 exec, 0xf")
    A(f"ds_write_b64 v24, v[{MW}:{LW}] offset:{STW}")
    A("s_mov_b64 exec, 1")
    A(f"ds_add_rtn_u32 v25, v5, v25 offset:{C_ST}")
    A("s_mov_b64 exec, -1")
    A("v_lshlrev_b32 v24, 3, v4"); A("v_lshl_add_u32 v26, v3, 5, v24")
    A("s_lshl_b32 s61, s6, 20")
    A(f"s_mul_i32 s59, s4, {GRP_STRIDE}"); A("s_add_u32 s61, s61, s59"); A(f"s_add_u32 s61, s61, {SH_ST}")
    A("s_waitcnt lgkmcnt(0)")
    A("v_readfirstlane_b32 s53, v25")
    A("s_cmp_lg_u32 s53, 3")
    A("s_cbranch_scc1 L_k_waitst")
    S = KD
    A(f"ds_read_b64 v[{S}:{S+1}], v26 offset:{STW}")
    A("s_waitcnt lgkmcnt(0)")
    A(f"v_max_f32_dpp v{S+2}, v{S}, v{S} row_ror:4 {DPPM}")
    A(f"v_mov_b32 v31, v{S}")
    A.nop(1)
    A(f"v_max_f32_dpp v{S+2}, v{S+2}, v{S+2} row_ror:8 {DPPM}")
    A(f"v_sub_f32 v{S}, v{S}, v{S+2}")
    A(f"v_mul_f32 v{S}, 0x3fb8aa3b, v{S}")
    A(f"v_exp_f32 v{S}, v{S}")
    A.nop(1)
    A(f"v_mul_f32 v{S+3}, v{S}, v{S+1}")
    A.nop(2)
    A(f"v_add_f32_dpp v{S+3}, v{S+3}, v{S+3} row_ror:4 {DPPM}")
    A.nop(2)
    A(f"v_add_f32_dpp v{S+3}, v{S+3}, v{S+3} row_ror:8 {DPPM}")
    A("s_lshr_b32 s59, s5, 1"); A("s_lshl_b32 s59, s59, 6"); A("s_and_b32 s62, s5, 1"); A("s_lshl_b32 s62, s62, 3")
    A("s_add_u32 s59, s59, s62"); A("s_add_u32 s59, s59, s61")
    A("v_lshlrev_b32 v27, 4, v0")
    A("s_mov_b64 exec, 0xf")
    A.lstore(f"buffer_store_dwordx2 v[{S+2}:{S+3}], v27, s[12:15], s59 offen")
    A("s_mov_b64 exec, -1")
    A.stamp(3)
    if not exact:
        A("v_lshlrev_b32 v24, 4, v4"); A("v_lshl_add_u32 v24, v3, 2, v24")
        A("v_mov_b32 v25, 1")
        A("s_mov_b64 exec, 0xffff")
        A(f"ds_write_b32 v24, v{S} offset:{STG}")
        A(f"ds_write_b32 v5, v25 offset:{F_ST}")
        A("s_mov_b64 exec, -1")
        A("s_branch L_k_waitst")
    lp = A.poll_begin()
    A(f"buffer_load_dwordx4 v[{S}:{S+3}], v27, s[12:15], s61 offen sc1")
    A("s_waitcnt vmcnt(0)")
    A(f"v_max3_u32 v{TS}, v{S}, v{S+1}, v{S+2}")
    A(f"v_max_u32 v{TS}, v{TS}, v{S+3}")
    A(f"v_cmp_eq_u32 vcc, -1, v{TS}")
    A.poll_end(lp)
    MG, LG = 28, 29
    A(f"v_max_f32 v{MG}, v{S}, v{S+2}")
    head_allreduce("max", MG, TS)
    for p in range(2): A(f"v_sub_f32 v{S+2*p}, v{S+2*p}, v{MG}")
    for p in range(2): A(f"v_mul_f32 v{S+2*p}, 0x3fb8aa3b, v{S+2*p}")
    for p in range(2): A(f"v_exp_f32 v{S+2*p}, v{S+2*p}")
    A.nop(1)
    A(f"v_mul_f32 v{LG}, v{S}, v{S+1}")
    A(f"v_fmac_f32 v{LG}, v{S+2}, v{S+3}")
    head_allreduce("add", LG, TS)
    A(f"v_rcp_f32 v{LG}, v{LG}")
    A("v_mov_b32 v25, 1")
    if exact:
        A("s_mov_b64 exec, 0xf")
        A(f"ds_write_b64 v24, v[{MG}:{LG}] offset:{STG}")
        A(f"ds_write_b32 v5, v25 offset:{F_ST}")
        A("s_mov_b64 exec, -1")
        A("s_branch L_k_havest")
        A.label("L_k_waitst")
        A.stamp(3)
        A.lds_wait(5, F_ST, "lg", 0, 25, sleep=1)
        A(f"ds_read_b64 v[{MG}:{LG}], v24 offset:{STG}")
        A("s_waitcnt lgkmcnt(0)")
        A.label("L_k_havest")
        A.stamp(4)
        A(f"v_sub_f32 v{MW}, v{MW}, v{MG}")
        A(f"v_mul_f32 v{MW}, 0x3fb8aa3b, v{MW}")
        A(f"v_exp_f32 v{MW}, v{MW}")
        A.nop(1)
        A(f"v_mul_f32 v{MW}, v{MW}, v{LG}")
    else:
        A(f"v_sub_f32 v31, v31, v{MG}")
        A(f"v_mul_f32 v31, 0x3fb8aa3b, v31")
        A(f"v_exp_f32 v31, v31")
        A("v_lshlrev_b32 v24, 4, v4"); A("v_lshl_add_u32 v24, v3, 2, v24")
        A(f"v_mul_f32 v31, v31, v{LG}")
        A("s_mov_b64 exec, 0xffff")
        A(f"ds_write_b32 v24, v31 offset:{STG}")
        A(f"ds_write_b32 v5, v25 offset:{F_ST}")
        A("s_mov_b64 exec, -1")
        A.stamp(4)
        A.label("L_k_waitst")
    if exact: write_p(True)
    A("s_waitcnt lgkmcnt(0)")
    if exact: A.stamp(5)
    A("s_cmp_eq_u32 s60, 0"); A("s_cbranch_scc1 L_reducer")
    A.dump_stamps(14 if diag == "kprog" else 6)
    A("s_endpgm")
    A.label("L_reducer")
    A("s_setprio 3")
    A("v_lshlrev_b32 v6, 4, v0")
    A("v_and_b32 v20, 1, v2"); A("v_lshlrev_b32 v20, 1, v20"); A("v_lshrrev_b32 v21, 1, v2"); A("v_or_b32 v20, v20, v21")
    A("v_lshl_add_u32 v21, v4, 2, v20")
    A("v_add_u32 v22, s4, v20"); A("v_and_b32 v22, 3, v22"); A("v_lshl_add_u32 v22, v22, 2, v4")
    A("s_lshl_b32 s59, s5, 4")
    A("v_add_lshl_u32 v21, v21, s59, 1")
    A("v_add_lshl_u32 v22, v22, s59, 1")
    A("s_lshl_b32 s61, s6, 20")
    A(f"s_mul_i32 s59, s4, {GRP_STRIDE}"); A("s_add_u32 s61, s61, s59")
    A("s_lshl_b32 s59, s5, 11")
    A("s_add_u32 s62, s59, s61"); A(f"s_add_u32 s62, s62, {SH_T1}")
    A(f"s_add_u32 s64, s59, {M_X2}")
    A("s_lshl_b32 s63, s2, 11"); A(f"s_add_u32 s63, s63, {M_X1}")
    A("s_mov_b32 s50, 0x000f000f"); A("s_mov_b32 s51, 0x000f000f")
    A.srd(8, 38, 1024)
    A.lds_wait(5, F_SC, "ge", 3, 8, sleep=4)
    A(f"ds_read_b128 v[24:27], v6 offset:{RBUF}")
    A("v_mov_b32 v28, 1"); A("v_mov_b32 v29, 2")
    if not exact:
        A("v_lshrrev_b32 v30, 3, v0"); A("v_lshlrev_b32 v30, 6, v30")
        A("v_and_b32 v31, 1, v3"); A("v_lshl_add_u32 v30, v31, 3, v30")
        A("s_lshl_b32 s59, s44, 4"); A("s_add_u32 s59, s59, s61"); A(f"s_add_u32 s59, s59, {SH_ST}")
        lp = A.poll_begin()
        A(f"s_sleep {st_sleep}")
        A("buffer_load_dwordx2 v[40:41], v30, s[12:15], s59 offen sc1")
        A("buffer_load_dwordx2 v[42:43], v30, s[12:15], s59 offen offset:512 sc1")
        A("s_waitcnt vmcnt(0)")
        A("v_max3_u32 v20, v40, v41, v42"); A("v_max_u32 v20, v20, v43")
        A("v_cmp_eq_u32 vcc, -1, v20")
        A.poll_end(lp)
        A("v_max_f32 v44, v40, v42")
        head_allreduce("max", 44, 20)
        A("v_sub_f32 v40, v40, v44"); A("v_sub_f32 v42, v42, v44")
        A("v_mul_f32 v40, 0x3fb8aa3b, v40"); A("v_mul_f32 v42, 0x3fb8aa3b, v42")
        A("v_exp_f32 v40, v40"); A("v_exp_f32 v42, v42")
        A.nop(1)
        A("v_mul_f32 v45, v40, v41"); A("v_fmac_f32 v45, v42, v43")
        head_allreduce("add", 45, 20)
        A("v_rcp_f32 v45, v45")
        A.nop(1)
        A("v_mul_f32 v40, v40, v45"); A("v_mul_f32 v42, v42, v45")
        A.stamp(4)
    if tlb:
        A(f"v_lshlrev_b32 v30, {tlb}, v0")
        A(f"v_add_u32 v31, {M_X1 + 1920}, v30")
        A("v_add_u32 v30, s61, v30"); A("v_add_u32 v30, 3072, v30")
        lp = A.uniq("tw"); dn = A.uniq("twd")
        A("s_mov_b32 s54, 0")
        A.label(lp)
        A(f"s_mov_b64 exec, {hex((1 << ((GRP_STRIDE >> tlb))) - 1)}")
        A("buffer_load_dword v32, v30, s[12:15], 0 offen sc1")
        A(f"s_mov_b64 exec, {hex((1 << (0x20000 >> tlb)) - 1)}")
        A("buffer_load_dword v33, v31, s[12:15], 0 offen sc1")
        A("s_mov_b64 exec, 1")
        A("buffer_load_dword v34, v5, s[8:11], 0 offen sc1")
        A("s_mov_b64 exec, -1")
        for k in range(4):
            A(f"ds_read_b32 v8, v5 offset:{F_OCNT}")
            A("s_waitcnt lgkmcnt(0)")
            A("v_readfirstlane_b32 s53, v8")
            A("s_cmp_ge_u32 s53, 1"); A(f"s_cbranch_scc1 {dn}")
            A("s_sleep 4")
        A("s_add_u32 s54, s54, 1"); A(f"s_cmp_lt_u32 s54, {TIMEOUT}"); A("s_waitcnt vmcnt(0)"); A(f"s_cbranch_scc1 {lp}")
        A.label(dn)
    def warm_loop(loads, thresh, vtmp):
        lp = A.uniq("wl"); dn = A.uniq("wld")
        A("s_mov_b32 s54, 0")
        A.label(lp)
        for ld in loads: A(ld)
        for k in range(3):
            A(f"ds_read_b32 v{vtmp}, v5 offset:{F_OCNT}")
            A("s_waitcnt lgkmcnt(0)")
            A(f"v_readfirstlane_b32 s53, v{vtmp}")
            A(f"s_cmp_ge_u32 s53, {thresh}"); A(f"s_cbranch_scc1 {dn}")
            A("s_sleep 6")
        A("s_add_u32 s54, s54, 1"); A(f"s_cmp_lt_u32 s54, {TIMEOUT}"); A("s_waitcnt vmcnt(0)"); A(f"s_cbranch_scc1 {lp}")
        A.label(dn)
    if warm:
        warm_loop(["buffer_load_dwordx4 v[32:35], v6, s[12:15], s62 offen sc1", "buffer_load_dwordx4 v[36:39], v6, s[12:15], s62 offen offset:1024 sc1"], 1, 8)
    A.lds_wait(5, F_OCNT, "ge", 8, 8, sleep=0)
    A.stamp(7)
    if stamps is True: A("s_memtime s[88:89]")
    if td and exact: A.red32p(6, "s62", 8, 16, 48, td, tpace)
    else: A.red32(6, "s62", 8, 12, 16, stamp=11, w=None if exact else (40, 42))
    A("v_cvt_pk_bf16_f32 v8, v8, v8")
    A("s_mov_b64 exec, s[50:51]")
    A.lstore(f"buffer_store_short v8, v21, s[12:15], s61 offen offset:{SH_AO}")
    A("s_mov_b64 exec, -1")
    A(f"ds_write_b32 v5, v28 offset:{F_R}")
    A.stamp(8)
    A.lds_wait(5, C_WQ, "ge", 8, 8, sleep=0)
    A("s_waitcnt vmcnt(0)")
    if xd: A.red32p(6, "s63", 8, 16, 48, xd, xpace)
    else: A.red32(6, "s63", 8, 12, 16)
    A.rbf(8, 8)
    A("v_mul_f32 v8, v24, v8")
    A.rbf(8, 8)
    A("v_add_f32 v8, v26, v8")
    A("v_cvt_pk_bf16_f32 v8, v8, v8")
    A("s_mov_b64 exec, s[50:51]")
    A.lstore(f"buffer_store_short v8, v22, s[12:15], s61 offen offset:{SH_AX2}")
    A("s_mov_b64 exec, -1")
    A(f"ds_write_b32 v5, v29 offset:{F_R}")
    A("v_and_b32 v26, 0xffff0000, v8")
    A.stamp(10)
    if "c" in wb:
        A("s_cmp_lg_u32 s5, 31"); A("s_cbranch_scc1 L_nowbc")
        A("buffer_wbl2 sc1")
        A.label("L_nowbc")
    A("s_cmp_lg_u32 s45, s4"); A("s_cbranch_scc1 L_rend")
    A.lds_wait(5, C_WQ, "ge", 12, 8, sleep=0)
    if xd: A("s_waitcnt vmcnt(0)"); A.red32p(6, "s64", 8, 16, 48, xd, xpace)
    else: A.red32(6, "s64", 8, 12, 16)
    A.rbf(8, 8)
    A("v_mul_f32 v8, v25, v8")
    A.rbf(8, 8)
    A("v_add_f32 v8, v26, v8")
    A("v_cvt_pk_bf16_f32 v8, v8, v8")
    A("s_mov_b64 exec, s[50:51]")
    A("buffer_store_short v8, v22, s[8:11], 0 offen")
    A("s_mov_b64 exec, -1")
    A("s_cmp_lg_u32 s2, 0"); A("s_cbranch_scc1 L_rend")
    A("s_mov_b64 exec, 1")
    A("buffer_store_dword v27, v5, s[12:15], 0 offen")
    A("s_mov_b64 exec, -1")
    if diag == "endsleep":
        for _ in range(4): A("s_sleep 127")
    if diag.startswith("amp"):
        k = int(diag[3:])
        A("s_memrealtime s[98:99]")
        A("s_waitcnt lgkmcnt(0)")
        A(f"s_sub_u32 s52, s{70+2*k}, s70")
        A("s_add_u32 s52, s52, s98")
        A.label("L_amp")
        A("s_memrealtime s[54:55]")
        A("s_waitcnt lgkmcnt(0)")
        A("s_sub_u32 s53, s52, s54")
        A("s_cmp_gt_i32 s53, 0")
        A("s_cbranch_scc1 L_amp")
    A.label("L_rend")
    A.stamp(14)
    if stamps is True: A("s_memtime s[96:97]")
    A.dump_stamps(15)
    A("s_endpgm")
    A.mark("V1")
    A.label("L_vwave")
    VD = 40
    A("s_sub_u32 s60, s3, 8")
    A(f"s_lshl_b32 s59, s60, {15 if not ilv else (10 if ilv == 1 else 12)}"); A("s_add_u32 s58, s58, s59")
    A("v_lshlrev_b32 v6, 4, v0")
    A("v_add_u32 v1, s58, v6")
    A("s_cmp_eq_u32 s60, 1"); A("s_cbranch_scc0 L_vnopf")
    A("s_getpc_b64 s[62:63]")
    A.label("L_pc_ref")
    A(f"s_sub_u32 s62, s62, L_pc_ref-{NAME}_kernel")
    A("s_subb_u32 s63, s63, 0")
    A("v_lshlrev_b32 v7, 7, v0")
    A("s_lshl_b32 s59, s5, 10")
    A("v_add_u32 v7, s59, v7")
    A("s_mov_b64 exec, 0xff")
    A("global_load_dword v40, v7, s[62:63]")
    A("s_mov_b64 exec, -1")
    A.label("L_vnopf")
    A("s_waitcnt lgkmcnt(0)")
    A.srd(8, 20, 0x2000000)
    A.srd(12, 42, WS_RECORDS)
    if "N" not in exp:
        A("s_cmp_eq_u32 s60, 0"); A("s_cbranch_scc1 L_v0")
    A.label("L_vbar")
    if "a" in wb:
        A("s_cmp_lg_u32 s60, 2"); A("s_cbranch_scc1 L_nowb")
        A("s_cmp_lg_u32 s5, 0"); A("s_cbranch_scc1 L_nowb")
        A("buffer_wbl2 sc1")
        A.label("L_nowb")
    A("s_barrier")
    A("s_branch L_vmain")
    A.label("L_v0")
    def clears(setbase, fl):
        for r in range(8, 12): A(f"v_mov_b32 v{r}, -1")
        A(f"s_mul_i32 s61, s4, {GRP_STRIDE}"); A(f"s_add_u32 s61, s61, {setbase}")
        A("s_lshl_b32 s62, s5, 11"); A("s_add_u32 s62, s62, s61"); A(f"s_add_u32 s62, s62, {SH_T1}")
        A("s_mul_i32 s63, s5, 768"); A("s_add_u32 s63, s63, s61")
        A(f"buffer_store_dwordx4 v[8:11], v6, s[12:15], s62 offen {fl}")
        A(f"buffer_store_dwordx4 v[8:11], v6, s[12:15], s62 offen offset:1024 {fl}")
        A("s_mov_b32 s64, -1"); A("s_mov_b32 s65, 0xffff")
        A("s_mov_b64 exec, s[64:65]")
        A(f"buffer_store_dwordx4 v[8:11], v6, s[12:15], s63 offen {fl}")
        A("s_mov_b64 exec, -1")
    A("s_load_dword s7, s[42:43], 0")
    clears(LSET, "")
    A("s_lshl_b32 s64, s2, 11"); A(f"s_add_u32 s64, s64, {M_X1}")
    A("buffer_store_dwordx4 v[8:11], v6, s[12:15], s64 offen sc1")
    A("buffer_store_dwordx4 v[8:11], v6, s[12:15], s64 offen offset:1024 sc1")
    A("s_cmp_lg_u32 s45, s4"); A("s_cbranch_scc1 L_v0_nox")
    A("s_lshl_b32 s64, s5, 11"); A(f"s_add_u32 s64, s64, {M_X2}")
    A("buffer_store_dwordx4 v[8:11], v6, s[12:15], s64 offen sc1")
    A("buffer_store_dwordx4 v[8:11], v6, s[12:15], s64 offen offset:1024 sc1")
    A.label("L_v0_nox")
    A("s_getreg_b32 s66, hwreg(HW_REG_XCC_ID)")
    A("s_barrier")
    A("s_branch L_v0b")
    A.mark("V2")
    A.label("L_v0b")
    A("s_waitcnt vmcnt(0) lgkmcnt(0)")
    A.stamp(7)
    mktag()
    A("v_mov_b32 v13, 16")
    A("s_mov_b64 exec, 1")
    A(f"ds_add_u32 v5, v13 offset:{F_CLR}")
    A("s_mov_b64 exec, -1")
    A("v_mov_b32 v12, s66"); A("v_mov_b32 v13, s7")
    A("s_lshl_b32 s59, s4, 8"); A(f"s_add_u32 s59, s59, {M_BL}")
    A("s_lshl_b32 s61, s5, 3"); A("s_add_u32 s67, s61, s59")
    A(f"s_add_u32 s68, s67, {M_BG - M_BL}")
    A("s_mov_b64 exec, 1")
    A(f"buffer_store_dwordx2 v[12:13], v5, s[12:15], s67 offen")
    A(f"buffer_store_dwordx2 v[12:13], v5, s[12:15], s68 offen sc1")
    def poll_b(limit, fallback):
        lp = A.uniq("pb"); done = A.uniq("pbd")
        A("s_mov_b64 exec, 0xffff")
        A("s_mov_b32 s54, 0")
        A.label(lp)
        A("s_sleep 2")
        A(f"buffer_load_dwordx4 v[8:11], v6, s[12:15], s59 offen sc1")
        A("s_add_u32 s54, s54, 1")
        A("s_waitcnt vmcnt(0)")
        A("v_xor_b32 v9, s7, v9"); A("v_xor_b32 v11, s7, v11"); A("v_or_b32 v16, v9, v11")
        A("v_cmp_ne_u32 vcc, 0, v16")
        A(f"s_cmp_gt_u32 s54, {limit}")
        A(f"s_cbranch_scc1 {fallback or done}")
        A(f"s_cbranch_vccnz {lp}")
        A.label(done)
    if "B" in exp: A("s_branch L_mode_done")
    poll_b(LOCAL_TRIES, "L_v0_far")
    A.label("L_v0_census")
    A(f"v_mov_b32_dpp v16, v8 row_ror:1 {DPPM}")
    A("v_xor_b32 v18, v8, v10")
    A("v_xor_b32 v16, v16, v8")
    A("v_or_b32 v16, v16, v18")
    A("v_cmp_ne_u32 vcc, 0, v16")
    A.nop(4)
    A("s_cbranch_vccz L_mode_done")
    A("s_mov_b64 exec, -1")
    A("s_mov_b32 s6, 2")
    clears(GSET, "sc1")
    A("s_waitcnt vmcnt(0)")
    A(f"s_add_u32 s68, s67, {M_BG2 - M_BL}")
    A("s_mov_b64 exec, 1")
    A(f"buffer_store_dwordx2 v[12:13], v5, s[12:15], s68 offen sc1")
    A("s_lshl_b32 s59, s4, 8"); A(f"s_add_u32 s59, s59, {M_BG2}")
    poll_b(TIMEOUT, None)
    A("s_branch L_mode_done")
    A.label("L_v0_far")
    A(f"s_add_u32 s59, s59, {M_BG - M_BL}")
    poll_b(TIMEOUT, None)
    A("s_branch L_v0_census")
    A.label("L_mode_done")
    A("s_mov_b64 exec, -1")
    A("v_mov_b32 v12, s6")
    A(f"ds_write_b32 v5, v12 offset:{F_MODE}")
    A("s_cmp_lg_u32 s5, 0"); A("s_cbranch_scc1 L_v0_nogb")
    A("v_mov_b32 v12, s7"); A("v_mov_b32 v13, s7")
    A("s_lshl_b32 s59, s4, 3")
    A("s_mov_b64 exec, 1")
    A(f"buffer_store_dwordx2 v[12:13], v5, s[12:15], s59 offen offset:{M_GB} sc1")
    A("s_mov_b64 exec, -1")
    A.label("L_v0_nogb")
    A.stamp(6)
    A.label("L_vmain")
    for r in list(range(8, 26)): A(f"v_mov_b32 v{r}, 0")
    A("v_mov_b32 v26, 0"); A("v_mov_b32 v27, 0")
    A("v_mov_b32 v7, 0xffff")
    A("v_mov_b32 v36, 0xffff0000")
    A("s_mov_b32 s62, 0x11111111"); A("s_mov_b32 s63, 0x11111111")
    A("s_mov_b32 s64, 0x22222222"); A("s_mov_b32 s65, 0x22222222")
    A("s_mov_b32 s66, 0x44444444"); A("s_mov_b32 s67, 0x44444444")
    A("s_mov_b32 s68, 0x88888888"); A("s_mov_b32 s69, 0x88888888")
    A("v_cndmask_b32 v26, v26, v7, s[62:63]"); A("v_cndmask_b32 v26, v26, v36, s[64:65]")
    A("v_cndmask_b32 v27, v27, v7, s[66:67]"); A("v_cndmask_b32 v27, v27, v36, s[68:69]")
    A("v_lshl_add_u32 v37, v2, 2, v3")
    A(f"v_mul_u32_u24 v37, {PSTR}, v37")
    A(f"s_mul_i32 s59, s60, {16*PSTR}")
    A("v_add_u32 v37, s59, v37")
    A("v_lshrrev_b32 v28, 3, v0"); A("v_and_b32 v29, 7, v0"); A("v_lshlrev_b32 v29, 4, v29")
    A("v_lshl_add_u32 v30, v28, 10, v29")
    A.srd(48, 24, 4096 * 1024)
    A("s_waitcnt vmcnt(0)")
    A("s_lshl_b32 s59, s60, 2")
    A("v_mov_b32 v38, s59")
    A.lds_wait(38, F_P, "ge", 1, 7, sleep=2)
    A.stamp(1)
    W = A.WV
    A("s_lshl_b32 s59, s4, 19"); A("s_lshl_b32 s61, s44, 17"); A("s_add_u32 s59, s59, s61")
    A("s_lshl_b32 s61, s60, 15"); A("s_add_u32 s59, s59, s61"); A("s_lshl_b32 s61, s45, 7"); A("s_add_u32 s59, s59, s61")
    A("s_lshl_b32 s62, s60, 12"); A(f"s_add_u32 s62, s62, {T_WO}")
    for i in range(4):
        A.dma(30, "s[48:51]", "s59", "s62")
        A("s_add_u32 s59, s59, 8192"); A("s_add_u32 s62, s62, 1024")
    def vload(i):
        r = VD + 4 * i
        if ilv == 1:
            if rot:
                A(f"buffer_load_dwordx4 v[{r}:{r+3}], v1, s[8:11], s57 offen nt")
                A(f"s_add_u32 s57, s57, {STEP}"); A(f"s_and_b32 s57, s57, {hex(32 * STEP - 1)}")
            else:
                A(f"buffer_load_dwordx4 v[{r}:{r+3}], v6, s[8:11], s58 offen nt")
                A(f"s_add_u32 s58, s58, {STEP}")
        else:
            A(f"buffer_load_dwordx4 v[{r}:{r+3}], v6, s[8:11], s58 offen offset:{(i % 4) * 1024} nt")
            if i % 4 == 3: A(f"s_add_u32 s58, s58, {4096 if not ilv else 16384}")
    ENT = list(ents)
    for i in range(32):
        if i in ENT: A(f"ds_read_b32 v39, v38 offset:{F_P}")
        A(f"s_waitcnt vmcnt({W-1})")
        if i == W: lds_signal_add(C_TAIL, 7)
        if i in ENT:
            A("s_waitcnt lgkmcnt(0)")
            A("v_readfirstlane_b32 s53, v39")
            A("s_cmp_ge_u32 s53, 2")
            A(f"s_cbranch_scc1 L_vp_{i}")
        vload(i)
    lds_signal_add(F_CLR, 7)
    A.stamp(2)
    if "S" in exp:
        A("s_waitcnt vmcnt(0)"); A.stamp(4); A.dump_stamps(9); A("s_endpgm")
    A.lds_wait(38, F_P, "ge", 2, 7)
    def preg(i):
        if i < 8: return 28 + i
        return VD + (i - 8)
    def xset(i): return 10 if i % 2 == 0 else 14
    def mkx(i):
        x = xset(i)
        A(f"v_and_b32 v{x}, v{preg(i)}, v26")
        A(f"v_and_b32 v{x+1}, v{preg(i)}, v27")
    def pvpath(s0_):
        plan = {k: [] for k in range(32)}
        nleft = 32 - s0_
        if nleft:
            r = max(1, -(-(32 - WV2) // nleft))
            k = 0
            burst = max(0, WV2 - W)
            for n, i in enumerate(range(s0_, 32)):
                plan[k].append(i)
                if n >= burst: k = max(k, min(k + r, i - WV2 + 1))
        issued = s0_
        A.stamp(3)
        A(f"ds_read_b32 v39, v5 offset:{F_Q}")
        A(f"ds_read_b128 v[28:31], v37 offset:{PBUF}")
        A(f"ds_read_b128 v[32:35], v37 offset:{PBUF+16}")
        for li in plan[0]:
            A(f"s_waitcnt vmcnt({WV2-1})")
            vload(li); issued += 1
            if li == 31: lds_signal_add(F_CLR, 7); A.stamp(2)
        plan[0] = []
        A("s_waitcnt lgkmcnt(0)")
        A("v_readfirstlane_b32 s6, v39")
        mkx(0)
        for i in range(32):
            d = VD + 4 * i; x = xset(i)
            if i + 1 < 32:
                if i + 1 == 8: A("s_waitcnt lgkmcnt(0)")
                mkx(i + 1)
            else: A.nop(2)
            if i == 24 and not exact:
                A.lds_wait(5, F_ST, "lg", 0, 7, sleep=1)
                A("s_lshl_b32 s59, s60, 4"); A("v_mov_b32 v7, s59")
                A(f"ds_read_b128 v[32:35], v7 offset:{STG}")
            for li in plan[i]:
                A(f"s_waitcnt vmcnt({WV2-1})")
                vload(li); issued += 1
                if li == 31: lds_signal_add(F_CLR, 7); A.stamp(2)
            A(f"s_waitcnt vmcnt({issued - 1 - i})")
            A(f"v_mfma_f32_16x16x32_bf16 v[18:21], v[{x}:{x+3}], v[{d}:{d+3}], v[18:21]")
            A(f"v_mfma_f32_16x16x32_bf16 v[22:25], v[{x-2}:{x+1}], v[{d}:{d+3}], v[22:25]")
            if i == 6:
                for q in range(6):
                    A(f"ds_read_b128 v[{VD+4*q}:{VD+4*q+3}], v37 offset:{PBUF + 32 + 16*q}")
            if i == 10:
                A("v_lshlrev_b32 v28, 5, v0"); A("s_lshl_b32 s59, s60, 11"); A("v_add_u32 v28, s59, v28")
                A("v_mov_b32 v29, 1")
                A("s_lshl_b32 s61, s6, 20")
                A(f"s_mul_i32 s59, s4, {GRP_STRIDE}"); A("s_add_u32 s61, s61, s59")
                A("s_lshl_b32 s59, s60, 14"); A("s_add_u32 s61, s61, s59")
                A("s_lshl_b32 s59, s5, 6"); A("s_add_u32 s61, s61, s59")
                A(f"s_add_u32 s61, s61, {SH_T1}")
                A("v_lshlrev_b32 v30, 4, v0"); A("s_lshl_b32 s59, s60, 9"); A("v_add_u32 v30, s59, v30")
                A("v_lshrrev_b32 v31, 2, v0"); A("v_lshlrev_b32 v31, 11, v31"); A("v_lshl_add_u32 v31, v4, 4, v31")
        assert issued == 32
    assert t1x4
    pvpath(32)
    A("s_branch L_pv_done")
    for e in ENT:
        A.label(f"L_vp_{e}")
        pvpath(e)
        if e != ENT[-1]: A("s_branch L_pv_done")
    A.label("L_pv_done")
    A.stamp(4)
    A.nop(7)
    A(f"ds_write_b128 v28, v[18:21] offset:{ORED}")
    A(f"ds_write_b128 v28, v[22:25] offset:{ORED+16}")
    A("s_mov_b64 exec, 1")
    A(f"ds_add_u32 v5, v29 offset:{F_OCNT}")
    A("s_mov_b64 exec, -1")
    A.lds_wait(5, F_OCNT, "ge", 4, 7, sleep=0)
    if t1x4:
        A("s_mov_b64 exec, 0xffffffff")
        for w in range(4):
            A(f"ds_read_b128 v[{40+4*w}:{43+4*w}], v30 offset:{ORED + 2048*w}")
        if exact:
            A("s_waitcnt lgkmcnt(2)")
            for k in range(4): A(f"v_add_f32 v{40+k}, v{40+k}, v{44+k}")
            A("s_waitcnt lgkmcnt(0)")
            for k in range(4): A(f"v_add_f32 v{48+k}, v{48+k}, v{52+k}")
            for k in range(4): A(f"v_add_f32 v{40+k}, v{40+k}, v{48+k}")
        else:
            for w in range(4):
                A(f"s_waitcnt lgkmcnt({3-w})")
                for k in range(4):
                    if w == 0: A(f"v_mul_f32 v{40+k}, v{40+k}, v32")
                    else: A(f"v_fmac_f32 v{40+k}, v{40+4*w+k}, v{32+w}")
        A.lstore("buffer_store_dwordx4 v[40:43], v31, s[12:15], s61 offen")
        A("s_mov_b64 exec, -1")
    else:
      for w in range(4):
        A(f"ds_read_b64 v[{40+2*w}:{41+2*w}], v30 offset:{ORED + 2048*w}")
      A("s_waitcnt lgkmcnt(0)")
    if t1x4: pass
    elif exact:
        A("v_add_f32 v40, v40, v42"); A("v_add_f32 v41, v41, v43")
        A("v_add_f32 v44, v44, v46"); A("v_add_f32 v45, v45, v47")
        A("v_add_f32 v40, v40, v44"); A("v_add_f32 v41, v41, v45")
    else:
        A("v_mul_f32 v40, v40, v32"); A("v_mul_f32 v41, v41, v32")
        for w in range(1, 4):
            A(f"v_fmac_f32 v40, v{40+2*w}, v{32+w}"); A(f"v_fmac_f32 v41, v{41+2*w}, v{32+w}")
    if not t1x4: A.lstore("buffer_store_dwordx2 v[40:41], v31, s[12:15], s61 offen")
    A.stamp(5)
    lds_signal_add(F_OCNT, 7)
    if stamps is True:
        A("s_waitcnt vmcnt(0)"); A.stamp(8)
    A.dump_stamps(9)
    A("s_endpgm")
    A.mark("H1")
    A.label("L_helper")
    A("s_setprio 3")
    A("v_lshlrev_b32 v6, 4, v0")
    A("v_lshlrev_b32 v7, 2, v0")
    A("s_cmp_lg_u32 s3, 0"); A("s_cbranch_scc1 L_h_noinit")
    A("ds_write_b32 v7, v5")
    A.label("L_h_noinit")
    A("v_lshrrev_b32 v8, 3, v0"); A("v_and_b32 v9, 7, v0"); A("v_lshlrev_b32 v9, 4, v9")
    A("s_movk_i32 s59, 6144")
    A("v_mad_u32_u24 v10, v8, s59, v9")
    A("v_lshl_add_u32 v11, v8, 13, v9")
    modjob()
    A("s_mov_b32 s65, s46")
    A("s_and_b32 s47, s46, 3")
    A("s_lshr_b32 s46, s46, 2")
    A("s_lshl_b32 s59, s47, 2"); A("s_add_u32 s59, s59, s3"); A(f"s_mul_i32 s59, s59, {32*6144}")
    A("s_lshl_b32 s60, s46, 7"); A("s_add_u32 s59, s59, s60")
    A("s_lshl_b32 s60, s44, 2"); A("s_add_u32 s60, s60, s3"); A("s_lshl_b32 s60, s60, 18")
    A("s_lshl_b32 s61, s4, 10"); A("s_add_u32 s60, s60, s61"); A("s_lshl_b32 s61, s45, 7"); A("s_add_u32 s60, s60, s61")
    A("s_lshl_b32 s62, s3, 12")
    A("s_lshl_b32 s66, s47, 8")
    A("s_lshl_b32 s67, s44, 8")
    A("s_waitcnt lgkmcnt(0)")
    A.srd(8, 36, 512 * 6144)
    A.srd(12, 42, WS_RECORDS)
    A.srd(48, 34, 1024)
    A("s_load_dword s7, s[42:43], 0")
    A("s_cmp_ge_u32 s65, 192"); A("s_cbranch_scc1 L_h_nomod1")
    A("buffer_load_dword v12, v7, s[48:51], s66 offen")
    A(f"s_add_u32 s63, s62, {T_MOD}")
    for i in range(4):
        A.dma(10, "s[8:11]", "s59", "s63")
        A(f"s_add_u32 s59, s59, {8*6144}"); A("s_add_u32 s63, s63, 1024")
    A.label("L_h_nomod1")
    A.srd(8, 22, 512 * 8192)
    A.srd(48, 16, 1024)
    A("buffer_load_dwordx4 v[152:155], v6, s[48:51], 0 offen")
    A("buffer_load_dword v156, v7, s[48:51], s67 offen")
    def wq_dma():
        A(f"s_add_u32 s63, s62, {T_WQ}")
        for i in range(4):
            A.dma(11, "s[8:11]", "s60", "s63")
            A("s_add_u32 s60, s60, 0x10000"); A("s_add_u32 s63, s63, 1024")
    A("s_barrier")
    A("s_branch L_h2")
    A.mark("H2")
    A.label("L_h2")
    if "H" in exp: wq_dma()
    if "H" in exp:
        A("s_waitcnt vmcnt(0)"); A.stamp(1); A.dump_stamps(15); A("s_endpgm")
    A("v_lshlrev_b32 v58, 10, v2"); A("v_lshl_add_u32 v58, v3, 7, v58"); A("v_lshl_add_u32 v58, v4, 3, v58")
    A("s_lshl_b32 s59, s3, 5"); A("v_add_u32 v58, s59, v58")
    A("v_lshlrev_b32 v112, 4, v2")
    A("s_lshl_b32 s59, s3, 8"); A(f"s_add_u32 s59, s59, {SBUF}")
    A("v_add_u32 v116, s59, v7")
    A("v_add_u32 v117, s59, v112")
    A("s_mov_b32 s68, 0x00010001"); A("s_mov_b32 s69, 0x00010001")
    def frags(dst, tile, nt):
        A(f"v_add_u32 v59, {tile}, v58")
        for t in range(nt):
            A(f"ds_read_b64_tr_b16 v[{dst+4*t}:{dst+4*t+1}], v59 offset:{4096*t}")
            A(f"ds_read_b64_tr_b16 v[{dst+4*t+2}:{dst+4*t+3}], v59 offset:{4096*t + 512}")
    def mfma_from_lds(vaddr, off, frag, nt, d=8):
        for t in range(nt): A(f"ds_read_b128 v[{24+4*t}:{27+4*t}], v{vaddr} offset:{off + 64*t}")
        A("s_waitcnt lgkmcnt(0)")
        for t in range(nt):
            A(f"v_mfma_f32_16x16x32_bf16 v[{d}:{d+3}], v[{frag+4*t}:{frag+4*t+3}], v[{24+4*t}:{27+4*t}], {'0' if t == 0 else f'v[{d}:{d+3}]'}")
    A("s_waitcnt lgkmcnt(0)")
    mktag()
    A("s_cmp_ge_u32 s65, 192"); A("s_cbranch_scc1 L_h_nomod2")
    A("s_waitcnt vmcnt(6)")
    A("v_lshlrev_b32 v13, 16, v12"); A("v_and_b32 v14, 0xffff0000, v12")
    for r in (13, 14): A(f"v_mul_f32 v{r+2}, 0xbfb8aa3b, v{r}")
    for r in (15, 16): A(f"v_exp_f32 v{r}, v{r}")
    A.nop(1)
    for r in (15, 16): A(f"v_add_f32 v{r}, 1.0, v{r}")
    for r in (15, 16): A(f"v_rcp_f32 v{r+2}, v{r}")
    A.nop(1)
    for r in (13, 14): A(f"v_mul_f32 v{r+6}, v{r}, v{r+4}")
    for r in (13, 14): A(f"v_fma_f32 v{r+8}, -v{r+6}, v{r+2}, v{r}")
    for r in (13, 14): A(f"v_fma_f32 v{r+8}, v{r+8}, v{r+4}, v{r+6}")
    for r in (13, 14):
        A(f"v_cmp_o_f32 vcc, v{r+8}, v{r+8}"); A.nop(2)
        A(f"v_cndmask_b32 v{r+8}, v{r+6}, v{r+8}, vcc")
    A("v_cvt_pk_bf16_f32 v13, v21, v22")
    A("ds_write_b32 v116, v13")
    A("s_waitcnt vmcnt(2)")
    lds_signal_add(C_MOD, 13)
    wq_dma()
    A.lds_wait(5, C_MOD, "ge", 4, 13, sleep=0)
    frags(64, T_MOD, 4)
    mfma_from_lds(117, 0, 64, 4)
    A(f"s_mul_i32 s59, s47, {3072*8}"); A("s_lshl_b32 s60, s46, 9"); A("s_add_u32 s59, s59, s60")
    A("s_lshl_b32 s60, s3, 7"); A("s_add_u32 s59, s59, s60"); A(f"s_add_u32 s59, s59, {M_MOD}")
    A("v_add_u32 v20, v116, v7")
    A("v_mov_b32 v17, s7"); A("v_mov_b32 v19, s7")
    A("s_mov_b64 exec, s[68:69]")
    A("ds_write_b128 v117, v[8:11]")
    A("s_mov_b64 exec, 0xff")
    A("ds_read_b64 v[12:13], v20")
    A("s_mov_b64 exec, -1")
    A("s_waitcnt lgkmcnt(0)")
    A("v_mov_b32 v16, v12"); A("v_mov_b32 v18, v13")
    A("s_mov_b64 exec, 0xff")
    A("buffer_store_dwordx4 v[16:19], v6, s[12:15], s59 offen sc1")
    A("s_mov_b64 exec, -1")
    A.stamp(1)
    A("s_waitcnt vmcnt(1)")
    A("s_branch L_h_wq_ok")
    A.label("L_h_nomod2")
    wq_dma()
    A.stamp(1)
    A("s_waitcnt vmcnt(0)")
    A.label("L_h_wq_ok")
    lds_signal_add(C_WQ, 13)
    def poll_mod(cols, vaddr, width, sleep):
        regs = []
        lp = A.poll_begin()
        A(f"s_sleep {sleep}")
        r = 120
        for ci, co in enumerate(cols):
            for p in range(4):
                A(f"s_mov_b32 s59, {M_MOD + p*3072*8 + co}")
                A(f"s_add_u32 s59, s59, s{vaddr[1]}")
                A(f"buffer_load_dwordx{width} v[{r}:{r+width-1}], v{vaddr[0]}, s[12:15], s59 offen sc1")
                regs.append(r); r += width
        A("s_waitcnt vmcnt(0)")
        A("v_mov_b32 v20, 0")
        for rr in regs:
            for t in range(1, width, 2):
                A(f"v_xor_b32 v21, s7, v{rr+t}"); A("v_or_b32 v20, v20, v21")
        A("v_cmp_ne_u32 vcc, 0, v20")
        A.poll_end(lp)
        return regs
    def sum4(dst, regs4, k):
        A(f"v_add_f32 v{dst}, v{regs4[0]+k}, v{regs4[1]+k}")
        A(f"v_add_f32 v{dst}, v{dst}, v{regs4[2]+k}")
        A(f"v_add_f32 v{dst}, v{dst}, v{regs4[3]+k}")
        A.rbf(dst, dst)
    A("s_lshl_b32 s63, s44, 10")
    A("s_cmp_lg_u32 s3, 0"); A("s_cbranch_scc1 L_h_waith")
    A.ln_stats(152, 20, 28, 29, 30, 31)
    if h_first: A(f"s_sleep {h_first}")
    regs = poll_mod([0, 512 * 8], (6, 63), 4, h_sleep)
    A.stamp(2)
    sum4(12, regs[0:4], 0); sum4(13, regs[0:4], 2)
    sum4(14, regs[4:8], 0); sum4(15, regs[4:8], 2)
    A("v_add_f32 v14, 1.0, v14"); A("v_add_f32 v15, 1.0, v15")
    A.rbf(14, 14); A.rbf(15, 15)
    A.modulate2(22, 156, 28, 29, 14, 15, 12, 13, 20)
    A(f"ds_write_b32 v7, v22 offset:{HBUF}")
    A("v_mov_b32 v13, 1")
    A(f"ds_write_b32 v5, v13 offset:{F_H}")
    A.label("L_h_waith")
    A.lds_wait(5, C_WQ, "ge", 4, 13, sleep=1)
    frags(64, T_WQ, 4)
    A.lds_wait(5, F_MODE, "lg", 0, 13, sleep=1)
    A("s_mov_b32 s6, s53")
    A("s_lshl_b32 s61, s6, 20")
    A(f"s_mul_i32 s59, s4, {GRP_STRIDE}"); A("s_add_u32 s61, s61, s59")
    A.lds_wait(5, F_H, "lg", 0, 13, sleep=1)
    mfma_from_lds(112, HBUF, 64, 4)
    A("s_lshl_b32 s59, s45, 2"); A("s_add_u32 s59, s59, s3")
    A("s_mov_b32 s46, s59")
    A("s_lshl_b32 s59, s59, 6"); A("s_lshl_b32 s60, s44, 11"); A("s_add_u32 s47, s59, s60")
    A("s_add_u32 s59, s47, s61"); A(f"s_add_u32 s59, s59, {SH_Q}")
    A("s_mov_b64 exec, s[68:69]")
    A.nop(2)
    A.lstore(f"buffer_store_dwordx4 v[8:11], v112, s[12:15], s59 offen")
    A("s_mov_b64 exec, -1")
    A.stamp(3)
    A("s_cmp_lg_u32 s3, 0"); A("s_cbranch_scc1 L_tailprep")
    A(f"s_add_u32 s59, s61, {SH_Q}"); A("s_add_u32 s60, s59, 4096")
    if q_first: A(f"s_sleep {q_first}")
    lp = A.poll_begin()
    if q_sleep: A(f"s_sleep {q_sleep}")
    for p in range(4):
        for hh in range(2):
            r = 120 + 8 * p + 4 * hh
            A(f"buffer_load_dwordx4 v[{r}:{r+3}], v6, s[12:15], {'s59' if p < 2 else 's60'} offen offset:{(p % 2) * 2048 + 1024 * hh} sc1")
    A("s_waitcnt vmcnt(0)")
    A("v_max3_u32 v21, v120, v121, v122")
    for r in range(123, 151, 2): A(f"v_max3_u32 v21, v21, v{r}, v{r+1}")
    A("v_max_u32 v21, v21, v151")
    A("v_cmp_eq_u32 vcc, -1, v21")
    A.poll_end(lp)
    for k in range(8):
        A(f"v_add_f32 v{120+k}, v{120+k}, v{128+k}")
        A(f"v_add_f32 v{120+k}, v{120+k}, v{136+k}")
        A(f"v_add_f32 v{120+k}, v{120+k}, v{144+k}")
    for k in range(4): A(f"v_cvt_pk_bf16_f32 v{8+k}, v{120+2*k}, v{121+2*k}")
    A("v_lshlrev_b32 v20, 3, v0")
    A(f"ds_write_b64 v20, v[8:9] offset:{QBUF}")
    A(f"ds_write_b64 v20, v[10:11] offset:{QBUF+512}")
    A("v_mov_b32 v12, s6")
    A(f"ds_write_b32 v5, v12 offset:{F_Q}")
    A.stamp(4)
    A.label("L_tailprep")
    A("s_cmp_lg_u32 s3, 1"); A("s_cbranch_scc1 L_tp1")
    regs = poll_mod([3 * 512 * 8, 4 * 512 * 8], (6, 63), 4, 16)
    sum4(108, regs[0:4], 0); sum4(109, regs[0:4], 2)
    sum4(110, regs[4:8], 0); sum4(111, regs[4:8], 2)
    A("v_add_f32 v110, 1.0, v110"); A("v_add_f32 v111, 1.0, v111")
    A.rbf(110, 110); A.rbf(111, 111)
    A(f"ds_write_b128 v6, v[108:111] offset:{SCB}")
    lds_signal_add(F_SC, 13)
    A.label("L_tp1")
    A("s_cmp_lg_u32 s3, 2"); A("s_cbranch_scc1 L_tp2")
    A("v_and_b32 v20, 1, v2"); A("v_lshlrev_b32 v20, 1, v20"); A("v_lshrrev_b32 v21, 1, v2"); A("v_or_b32 v20, v20, v21")
    A("v_add_u32 v20, s4, v20"); A("v_and_b32 v20, 3, v20"); A("v_lshl_add_u32 v20, v20, 2, v4")
    A("s_lshl_b32 s59, s5, 4"); A("v_add_u32 v20, s59, v20")
    A("v_lshlrev_b32 v23, 1, v20")
    A("v_lshlrev_b32 v22, 3, v20")
    A("buffer_load_ushort v106, v23, s[48:51], 0 offen")
    A("s_mov_b32 s62, 0")
    regs = poll_mod([2 * 512 * 8, 5 * 512 * 8], (22, 62), 2, 16)
    sum4(104, regs[0:4], 0); sum4(105, regs[4:8], 0)
    A("v_lshlrev_b32 v106, 16, v106")
    A("v_mov_b32 v107, s7")
    A(f"ds_write_b128 v6, v[104:107] offset:{RBUF}")
    lds_signal_add(F_SC, 13)
    A.label("L_tp2")
    A("s_cmp_lg_u32 s3, 3"); A("s_cbranch_scc1 L_tp3")
    A("s_mov_b64 exec, 0xf")
    lp = A.poll_begin()
    A("s_sleep 32")
    A(f"buffer_load_dwordx4 v[8:11], v6, s[12:15], 0 offen offset:{M_GB} sc1")
    A("s_waitcnt vmcnt(0)")
    A("v_xor_b32 v9, s7, v9"); A("v_xor_b32 v11, s7, v11"); A("v_or_b32 v9, v9, v11")
    A("v_cmp_ne_u32 vcc, 0, v9")
    A.poll_end(lp)
    A("s_mov_b64 exec, -1")
    lds_signal_add(F_SC, 13)
    A.label("L_tp3")
    A.lds_wait(5, F_SC, "ge", 3, 13, sleep=4)
    A(f"ds_read_b128 v[108:111], v6 offset:{SCB}")
    A.lds_wait(5, C_TAIL, "ge", 4, 13, sleep=4)
    frags(64, T_WO, 4)
    A("v_add_u32 v113, s67, v112")
    A("v_add_u32 v114, s67, v7")
    ffn_consts()
    A("s_mov_b32 s52, s57")
    A("s_lshl_b32 s62, s44, 3"); A("s_add_u32 s62, s62, s4"); A("s_lshl_b32 s62, s62, 6")
    A("s_lshl_b32 s63, s46, 14"); A("s_add_u32 s64, s62, s63"); A(f"s_add_u32 s64, s64, {M_X1}")
    A("s_lshl_b32 s63, s46, 11"); A("s_add_u32 s65, s62, s63"); A(f"s_add_u32 s65, s65, {M_X2}")
    A("v_lshlrev_b32 v118, 4, v4")
    A("v_lshrrev_b32 v115, 2, v0"); A("v_lshl_add_u32 v115, v115, 11, v118")
    A("s_lshl_b32 s59, s3, 2"); A("s_lshl_b64 s[26:27], 0xf, s59")
    A("s_add_u32 s47, s47, s61"); A(f"s_add_u32 s47, s47, {SH_GU}")
    A(f"s_add_u32 s62, s61, {SH_GU}"); A("s_add_u32 s63, s62, 4096")
    A("v_lshlrev_b32 v119, 1, v0"); A("s_lshl_b32 s59, s3, 8"); A(f"s_add_u32 s59, s59, {SBUF}"); A("v_add_u32 v119, s59, v119")
    A("s_waitcnt lgkmcnt(0)")
    A.stamp(6)
    A("v_lshrrev_b32 v24, 3, v0"); A("v_and_b32 v25, 7, v0"); A("v_lshlrev_b32 v25, 4, v25")
    A("v_lshl_add_u32 v26, v24, 10, v25")
    A("s_movk_i32 s59, 3584")
    A("v_mad_u32_u24 v27, v24, s59, v25")
    A.srd(48, 32, 1792 * 1024)
    A("s_cmp_lt_u32 s45, 4")
    A("s_cselect_b32 s8, s28, s30"); A("s_cselect_b32 s9, s29, s31"); A(f"s_mov_b32 s10, {hex(512*3584)}"); A("s_mov_b32 s11, 0x20000")
    A("s_lshl_b32 s59, s5, 8"); A(f"s_add_u32 s59, s59, {SH_GU}")
    A("v_add_u32 v28, s59, v6")
    A("s_lshl_b32 s59, s5, 6"); A("s_sub_u32 s59, s59, 256")
    A("v_add_u32 v29, s59, v6")
    A("v_cmp_gt_u32 vcc, 16, v0")
    A("s_lshl_b32 s59, s5, 11"); A("s_lshl_b32 s60, s3, 10"); A("s_add_u32 s59, s59, s60"); A(f"s_add_u32 s59, s59, {SH_T1}")
    A("v_cndmask_b32 v28, v29, v28, vcc")
    A("v_add_u32 v29, s59, v6")
    A.lds_wait(5, F_CLR, "ge", 20, 8, sleep=2)
    A("s_cmp_gt_u32 s3, 2"); A("s_cbranch_scc1 L_w_done")
    A("s_cmp_eq_u32 s3, 2"); A("s_cbranch_scc1 L_w_sh")
    A("buffer_load_dwordx4 v[32:35], v29, s[12:15], s61 offen sc1")
    A("s_branch L_w_done")
    A.label("L_w_sh")
    A("s_mov_b64 exec, 0xfffff")
    A("buffer_load_dwordx4 v[32:35], v28, s[12:15], s61 offen sc1")
    A("s_mov_b64 exec, -1")
    A.label("L_w_done")
    A("v_mov_b32 v120, v26"); A("v_mov_b32 v121, v27"); A("s_mov_b32 s66, s56")
    def tile_gu():
        A("s_and_b32 s60, s45, 3"); A("s_cmp_ge_u32 s60, s52"); A("s_cbranch_scc1 L_t_nogu")
        A("s_lshl_b32 s60, s60, 6"); A("s_add_u32 s60, s60, s66"); A("s_lshl_b32 s60, s60, 1")
        A("s_lshl_b32 s59, s44, 2"); A("s_add_u32 s59, s59, s3"); A(f"s_mul_i32 s59, s59, {32*3584}")
        A("s_add_u32 s59, s59, s60")
        A("s_lshl_b32 s60, s3, 12"); A(f"s_add_u32 s60, s60, {T_GU}")
        for i in range(4):
            A.dma(121, "s[8:11]", "s59", "s60")
            A(f"s_add_u32 s59, s59, {8*3584}"); A("s_add_u32 s60, s60, 1024")
        A.label("L_t_nogu")
    def tile_dn():
        A("s_cmp_ge_u32 s44, s52"); A("s_cbranch_scc1 L_t_nodn")
        A("s_lshl_b32 s59, s44, 6"); A("s_add_u32 s59, s59, s66"); A("s_lshl_b32 s60, s3, 4"); A("s_add_u32 s59, s59, s60")
        A("s_lshl_b32 s59, s59, 10"); A("s_lshl_b32 s60, s45, 7"); A("s_add_u32 s59, s59, s60")
        A("s_lshl_b32 s60, s3, 11"); A(f"s_add_u32 s60, s60, {T_DN}")
        for i in range(2):
            A.dma(120, "s[48:51]", "s59", "s60")
            A("s_add_u32 s59, s59, 8192"); A("s_add_u32 s60, s60, 1024")
        A.label("L_t_nodn")
    def tiles_done():
        A("s_waitcnt vmcnt(0)")
        lds_signal_add(C_TAIL, 8)
    if tmode in "AB": tile_gu()
    if tmode == "A": tile_dn(); tiles_done()
    A.lds_wait(5, F_OCNT, "ge", 8, 8, sleep=2)
    A("s_cmp_lt_u32 s44, s52"); A("s_cbranch_scc1 L_has_down")
    for r in range(8, 12): A(f"v_mov_b32 v{r}, 0")
    A("s_mov_b64 exec, 0xf")
    A("buffer_store_dwordx4 v[8:11], v6, s[12:15], s65 offen sc1")
    A("s_mov_b64 exec, -1")
    A.label("L_has_down")
    def xstore(sbase, voff, mask):
        A(f"v_mov_b32_dpp v9, v8 row_ror:12 {DPPM}")
        A(f"v_mov_b32_dpp v10, v8 row_ror:8 {DPPM}")
        A(f"v_mov_b32_dpp v11, v8 row_ror:4 {DPPM}")
        A(f"s_mov_b64 exec, {mask}")
        A(f"buffer_store_dwordx4 v[8:11], v{voff}, s[12:15], {sbase} offen sc1")
        A("s_mov_b64 exec, -1")
    A.lds_wait(5, F_R, "ge", 1, 8, sleep=spin)
    lp = A.poll_begin()
    for t in range(4):
        A(f"buffer_load_dwordx4 v[{24+4*t}:{27+4*t}], v113, s[12:15], s61 offen offset:{SH_AO + 64*t} sc1")
    A("s_waitcnt vmcnt(0)")
    for t in range(4):
        A(f"v_mfma_f32_16x16x32_bf16 v[8:11], v[{24+4*t}:{27+4*t}], v[{64+4*t}:{67+4*t}], {'0' if t == 0 else 'v[8:11]'}")
    A("v_pk_max_u16 v16, v24, v25")
    for r in range(26, 40): A(f"v_pk_max_u16 v16, v16, v{r}")
    A("v_lshrrev_b32 v17, 16, v16")
    A("v_max_u16 v16, v16, v17")
    A("v_cmp_eq_u16 vcc, -1, v16")
    A.poll_end(lp)
    xstore("s64", 115, "0xffffffff")
    lds_signal_add(C_WQ, 13)
    A.stamp(9)
    if tmode != "A":
        A.lds_wait(5, C_WQ, "ge", 8, 8, sleep=0)
        if tmode == "C": tile_gu()
        tile_dn(); tiles_done()
    A.lds_wait(5, C_TAIL, "ge", 8, 8, sleep=0)
    frags(80, T_GU, 4); frags(96, T_DN, 2)
    A.lds_wait(5, F_R, "ge", 2, 8, sleep=spin)
    A("s_and_b32 s59, s45, 3"); A("s_cmp_ge_u32 s59, s52"); A("s_cbranch_scc1 L_gu")
    lp = A.poll_begin()
    A(f"buffer_load_dwordx4 v[8:11], v6, s[12:15], s61 offen offset:{SH_AX2} sc1")
    A(f"buffer_load_dword v12, v114, s[12:15], s61 offen offset:{SH_AX2} sc1")
    A("s_waitcnt vmcnt(0)")
    A("v_pk_max_u16 v16, v8, v9"); A("v_pk_max_u16 v17, v10, v11"); A("v_pk_max_u16 v16, v16, v12"); A("v_pk_max_u16 v16, v16, v17")
    A("v_lshrrev_b32 v17, 16, v16")
    A("v_max_u16 v16, v16, v17")
    A("v_cmp_eq_u16 vcc, -1, v16")
    A.poll_end(lp)
    A.stamp(11)
    A.ln_stats(8, 24, 32, 33, 34, 35)
    A.modulate2(22, 12, 32, 33, 110, 111, 108, 109, 20)
    A("ds_write_b32 v116, v22")
    mfma_from_lds(117, 0, 80, 4)
    A("s_mov_b64 exec, s[68:69]")
    A.nop(6)
    A.lstore("buffer_store_dwordx4 v[8:11], v112, s[12:15], s47 offen")
    A("s_mov_b64 exec, -1")
    A.stamp(12)
    A.label("L_gu")
    A("s_cmp_ge_u32 s44, s52"); A("s_cbranch_scc1 L_hend")
    lp = A.poll_begin()
    for p in range(4):
        sb_ = "s62" if p < 2 else "s63"
        A(f"buffer_load_dword v{8+p}, v114, s[12:15], {sb_} offen offset:{(p % 2) * 2048} sc1")
        A(f"buffer_load_dword v{12+p}, v114, s[12:15], {sb_} offen offset:{(p % 2) * 2048 + 1024} sc1")
    A("s_waitcnt vmcnt(0)")
    A("v_max3_u32 v16, v8, v9, v10"); A("v_max3_u32 v16, v16, v11, v12"); A("v_max3_u32 v16, v16, v13, v14"); A("v_max_u32 v16, v16, v15")
    A("v_cmp_eq_u32 vcc, -1, v16")
    A("v_add_f32 v8, v8, v9"); A("v_add_f32 v12, v12, v13")
    A("v_add_f32 v8, v8, v10"); A("v_add_f32 v12, v12, v14")
    A("v_add_f32 v8, v8, v11"); A("v_add_f32 v12, v12, v15")
    A.poll_end(lp)
    A("v_cvt_pk_bf16_f32 v12, v8, v12")
    A("v_lshlrev_b32 v8, 16, v12"); A("v_and_b32 v12, 0xffff0000, v12")
    A("v_mul_f32 v9, v8, v8")
    A("v_mul_f32 v9, 0x3d372713, v9")
    A("v_fma_f32 v9, v9, v8, v8")
    A("v_mul_f32 v9, 0xc0135761, v9")
    A("v_exp_f32 v9, v9")
    A.nop(1)
    A("v_add_f32 v9, 1.0, v9")
    A("v_rcp_f32 v9, v9")
    A.nop(1)
    A("v_mul_f32 v8, v8, v9")
    A.rbf(8, 8)
    A("v_mul_f32 v8, v8, v12")
    A("v_cvt_pk_bf16_f32 v8, v8, v8")
    A("ds_write_b16 v119, v8")
    for t in range(2): A(f"ds_read_b128 v[{24+4*t}:{27+4*t}], v117 offset:{64*t}")
    A("s_waitcnt lgkmcnt(0)")
    for t in range(2):
        A(f"v_mfma_f32_16x16x32_bf16 v[8:11], v[{24+4*t}:{27+4*t}], v[{96+4*t}:{99+4*t}], {'0' if t == 0 else 'v[8:11]'}")
    A.nop(8)
    xstore("s65", 118, "s[26:27]")
    A.stamp(13)
    A.label("L_hend")
    lds_signal_add(C_WQ, 13)
    A.dump_stamps(14)
    A.label("L_exit")
    A("s_endpgm")
    A.mark("T")
    A.L += A.tail
    segs = {}; cur = "P"; segs[cur] = []
    for x in A.L:
        if x.startswith("@@"): cur = x[2:]; segs[cur] = []
        else: segs[cur].append(x)
    order = ["P", "H1", "V1", "H2", "K", "V2", "T"] if layout == 1 else (["P", "H1", "V1", "K", "H2", "V2", "T"] if layout == 2 else ["P", "K", "V1", "V2", "H1", "H2", "T"])
    A.L = [x for k in order for x in segs[k]]
    A.L.append(".fill 4096, 4, 0xBF800000")
    body = "\n".join(A.L)
    src = HEADER + f"""; @launch grid=(256,1,1) block=(768,1,1) lds={LDS_BYTES}
;
; One persistent launch, 256 workgroups (one per CU) x 12 waves; generated by the author's own script.
;   workgroup b: g = b & 7 (kv head / "group", one XCD under round-robin placement), j = b >> 3 (512 keys)
;   waves 0-3  : GEMV waves (adaLN mod, q, wo, gate/up, down as [128 x 64] weight tiles, LDS-DMA + transposing reads + MFMA)
;   waves 4-7  : K waves (K -> registers, QK^T by MFMA, exact softmax with the group-wide max and sum); wave 4 then reduces
;   waves 8-11 : V waves (V -> registers, P.V by MFMA)
; Hand-offs go through d_ws: mailboxes are either cleared to a sentinel inside the launch or carry a per-launch tag
; (derived from an epoch word in d_ws).  Group-local hand-offs use plain stores only when a census of HW_REG_XCC_ID
; shows the whole group on one XCD; otherwise they switch to a second set of mailboxes written with sc1.
; Every bf16 rounding of the reference is reproduced.  All spin loops are bounded.
.amdgcn_target "amdgcn-amd-amdhsa--gfx950"
.text
.globl {NAME}_kernel
.p2align 8
.type {NAME}_kernel,@function
{NAME}_kernel:
{body}
.section .rodata,"a"
.p2align 6
.amdhsa_kernel {NAME}_kernel
  .amdhsa_next_free_vgpr 168
  .amdhsa_next_free_sgpr 102
  .amdhsa_accum_offset 168
  .amdhsa_group_segment_fixed_size 0
  .amdhsa_kernarg_size 112
  .amdhsa_user_sgpr_count 2
  .amdhsa_user_sgpr_kernarg_segment_ptr 1
  .amdhsa_system_sgpr_workgroup_id_x 1
  .amdhsa_float_denorm_mode_32 3
  .amdhsa_float_denorm_mode_16_64 3
.end_amdhsa_kernel
"""
    open(path, "w").write(src)

if __name__ == "__main__":
    gen(sys.argv[1] if len(sys.argv) > 1 else "k.s", stamps=("stamps" in sys.argv))
```
